```python
import torch

def _softmax(x, axis=-1):
    return torch.softmax(x, dim=axis)
def _gelu(x):
    return torch.nn.functional.gelu(x, approximate="tanh")
def _silu(x):
    return torch.nn.functional.silu(x)
def _sigmoid(x):
    return torch.sigmoid(x)
def _layernorm(x, axis=-1, eps=1e-5):
    m = x.mean(dim=axis, keepdim=True)
    v = x.var(dim=axis, keepdim=True, unbiased=False)
    return (x - m) / torch.sqrt(v + eps)
def _scatter_add(tgt, idx, src, axis=0):
    return tgt.clone().index_add_(axis, idx, src)
def _segment_sum(src, seg, n):
    out = torch.zeros((n,) + src.shape[1:], dtype=src.dtype)
    return out.index_add_(0, seg, src)
def _pad(x, pw):
    flat = tuple(v for pair in reversed(pw) for v in pair)
    return torch.nn.functional.pad(x, flat)

kernel_name = 'gated_mix__sliding_block__dense_activation_relu__prompt'

def setup_inputs():

    _w = (lambda a: (lambda t: t.to(torch.bfloat16) if t.is_floating_point() else t)(torch.as_tensor(a)))
    def _A_setup():
        B, S, D = 1, 2048, 1024
        return {
            "x": _w((lambda *s: torch.randn(*s, dtype=torch.bfloat16) * 0.05)(B, S, D)),
            "wqkv": _w((lambda *s: torch.randn(*s, dtype=torch.bfloat16) * 0.8)(D, 3 * D)),
            "wo": _w((lambda *s: torch.randn(*s, dtype=torch.bfloat16) * 0.05)(D, D)),
        }
    _A_in = _A_setup()

    def _B_setup():
        B, S, D, Dff = 1, 2048, 1024, 3584
        return {
            "x": _w((lambda *s: torch.randn(*s, dtype=torch.bfloat16) * 0.05)(B, S, D)),
            "w1": _w((lambda *s: torch.randn(*s, dtype=torch.bfloat16) * 0.05)(D, Dff)),
            "w2": _w((lambda *s: torch.randn(*s, dtype=torch.bfloat16) * 0.05)(Dff, D)),
        }
    _B_in = _B_setup()

    return {
        "A_x": _A_in["x"],
        "A_wqkv": _A_in["wqkv"],
        "A_wo": _A_in["wo"],
        "B_x": _B_in["x"],
        "B_w1": _B_in["w1"],
        "B_w2": _B_in["w2"],
        "gate_w": _w((lambda *s: torch.randn(*s, dtype=torch.bfloat16) * 0.05)(1024) * 16.0),
    }

def reference(A_x, A_wqkv, A_wo, B_x, B_w1, B_w2, gate_w):
    def _A_ref(x, wqkv, wo):
        B, S, D = x.shape
        H = 32; Dh = D // H; W = 256
        qkv = (lambda x, *d: x.permute(*d))((x @ wqkv).reshape(B, S, 3, H, Dh), 2, 0, 3, 1, 4)
        q, k, v = qkv[0], qkv[1], qkv[2]
        scores = torch.einsum("bhqd,bhkd->bhqk", q, k) * (Dh ** -0.5)
        idx = torch.arange(S)
        mask = (idx[:, None] - idx[None, :] >= 0) & (idx[:, None] - idx[None, :] < W)
        scores = torch.where(mask[None, None], scores, -1e9)
        p = _softmax(scores, axis=-1)
        o = torch.einsum("bhqk,bhkd->bhqd", p, v)
        return (lambda x, *d: x.permute(*d))(o, 0, 2, 1, 3).reshape(B, S, D) @ wo

    def _B_ref(x, w1, w2):
        h = torch.einsum("bsd,df->bsf", x, w1)
        zero = torch.zeros_like(h)
        h = torch.maximum(h, zero)
        return torch.einsum("bsf,fd->bsd", h, w2)

    x = A_x
    g = _sigmoid((x * gate_w).sum(-1, keepdims=True))
    a = _A_ref(x, A_wqkv, A_wo)
    b = _B_ref(x, B_w1, B_w2)
    return g * a + (1 - g) * b
```

```python
class Asm:
    def __init__(self):
        self.lines = []

    def __call__(self, s):
        self.lines.append("    " + s)

    def label(self, l):
        self.lines.append(l + ":")

    def raw(self, s):
        self.lines.append(s)

    def comment(self, s):
        self.lines.append("    ; " + s)

    def text(self):
        return "\n".join(self.lines) + "\n"

    def extend(self, other):
        self.lines.extend(other.lines)


class Counter:
    def __init__(self, maxv):
        self.maxv = maxv
        self.ops = []

    def issue(self, tag):
        self.ops.append(tag)

    def need(self, pred):
        idx = -1
        for i, t in enumerate(self.ops):
            if pred(t):
                idx = i
        if idx < 0:
            return None
        n = len(self.ops) - 1 - idx
        if n > self.maxv:
            n = self.maxv
        self.ops = self.ops[len(self.ops) - n:] if n > 0 else []
        return n

    def drain(self):
        self.ops = []


def vr(base, n=1, pfx="v"):
    if n == 1:
        return "%s%d" % (pfx, base)
    return "%s[%d:%d]" % (pfx, base, base + n - 1)


def ar(base, n=1):
    return vr(base, n, "a")


def sr(base, n=1):
    return vr(base, n, "s")


def waitcnt(vm=None, lgkm=None):
    parts = []
    if vm is not None:
        parts.append("vmcnt(%d)" % vm)
    if lgkm is not None:
        parts.append("lgkmcnt(%d)" % lgkm)
    if not parts:
        return None
    return "s_waitcnt " + " ".join(parts)


def kernel_header(name):
    return (".globl %s\n.p2align 8\n.type %s,@function\n%s:\n" % (name, name, name))


def kernel_desc(name, vgpr, accum, sgpr=102):
    return """.p2align 6
.amdhsa_kernel %s
  .amdhsa_next_free_vgpr %d
  .amdhsa_next_free_sgpr %d
  .amdhsa_accum_offset %d
  .amdhsa_group_segment_fixed_size 0
  .amdhsa_kernarg_size 80
  .amdhsa_user_sgpr_count 2
  .amdhsa_user_sgpr_kernarg_segment_ptr 1
  .amdhsa_system_sgpr_workgroup_id_x 1
.end_amdhsa_kernel
""" % (name, vgpr, sgpr, accum)


def b128_groups():
    g0 = list(range(0, 4)) + list(range(12, 16)) + list(range(20, 28))
    g1 = list(range(4, 12)) + list(range(16, 20)) + list(range(28, 32))
    return [g0, g1, [x + 32 for x in g0], [x + 32 for x in g1]]


def check_b128_conflict(addr_of_lane):
    worst = 1
    for grp in b128_groups():
        cnt = {}
        for l in grp:
            a = addr_of_lane[l]
            for d in range(4):
                bank = ((a // 4) + d) % 64
                cnt.setdefault(bank, set()).add(a // 4 + d)
        worst = max(worst, max(len(v) for v in cnt.values()))
    return worst


def check_b64_conflict(addr_of_lane):
    worst = 1
    for grp in (range(0, 32), range(32, 64)):
        cnt = {}
        for l in grp:
            a = addr_of_lane[l]
            for d in range(2):
                bank = ((a // 4) + d) % 64
                cnt.setdefault(bank, set()).add(a // 4 + d)
        worst = max(worst, max(len(v) for v in cnt.values()))
    return worst


import re as _re

_REG = _re.compile(r"^(v|a|s)(\d+)$|^(v|a|s)\[(\d+):(\d+)\]$")
TRANS = ("v_exp_f32", "v_log_f32", "v_rcp_f32", "v_rsq_f32", "v_sqrt_f32", "v_sin_f32", "v_cos_f32")


def _regs(tok):
    tok = tok.strip()
    if tok.startswith("-"):
        tok = tok[1:]
    if tok.startswith("|") and tok.endswith("|"):
        tok = tok[1:-1]
    if tok == "vcc":
        return [("s", 106), ("s", 107)]
    if tok == "m0":
        return [("s", 124)]
    if tok == "exec":
        return [("s", 126), ("s", 127)]
    m = _REG.match(tok)
    if not m:
        return []
    if m.group(1):
        return [(m.group(1), int(m.group(2)))]
    return [(m.group(3), i) for i in range(int(m.group(4)), int(m.group(5)) + 1)]


def _parse(line):
    s = line.split(";")[0].strip()
    if not s or s.endswith(":") or s.startswith("."):
        return None
    parts = s.split(None, 1)
    op = parts[0]
    rest = parts[1] if len(parts) > 1 else ""
    toks = [t.strip() for t in rest.split(",")]
    mods = ""
    if toks:
        lt = toks[-1].split()
        if lt:
            toks[-1] = lt[0]
            mods = " ".join(lt[1:])
    return op, toks, mods


def fix_hazards(lines, verbose=False):
    out = []
    pos = 0
    valu_w = {}
    trans_w = {}
    valu_sw = {}
    mfma_w = {}
    mfma_c = {}
    st_data = {}
    m0_w = -100
    nins = 0
    for line in lines:
        p = _parse(line)
        if p is None:
            out.append(line)
            continue
        op, toks, mods = p
        need = 0

        def req(table, regs, ws):
            nonlocal need
            for r in regs:
                if r in table:
                    v = table[r]
                    q = v[0] if isinstance(v, tuple) else v
                    need = max(need, ws - (pos - q - 1))

        is_mfma = op.startswith("v_mfma")
        is_valu = op.startswith("v_") and not is_mfma
        is_vmem = op.startswith("buffer_") or op.startswith("global_")
        is_ds = op.startswith("ds_")
        dst, src = [], []
        if is_mfma:
            dst = _regs(toks[0])
            A, B, C = _regs(toks[1]), _regs(toks[2]), _regs(toks[3])
            req(valu_w, A + B + C, 2)
            req(mfma_w, A + B, 8)
            for r in C:
                if r in mfma_w:
                    q, ds_, dl = mfma_w[r]
                    if not (C[0] == ds_ and len(C) == dl):
                        need = max(need, 6 - (pos - q - 1))
            for r in dst:
                if r in mfma_w and r not in C:
                    need = max(need, 6 - (pos - mfma_w[r][0] - 1))
        elif is_valu:
            if op.startswith("v_cmp") or op.startswith("v_readfirstlane") or op.startswith("v_readlane"):
                dst = _regs(toks[0])
                src = sum([_regs(t) for t in toks[1:]], [])
            elif "swap" in op:
                dst = _regs(toks[0]) + _regs(toks[1])
                src = dst
            else:
                dst = _regs(toks[0])
                src = sum([_regs(t) for t in toks[1:]], [])
                if op.startswith("v_fmac") or op.startswith("v_dot2c") or "dpp" in op or op.startswith("v_mac"):
                    src = src + dst
            vs = [r for r in src if r[0] != "s"]
            ss = [r for r in src if r[0] == "s"]
            vd = [r for r in dst if r[0] != "s"]
            req(mfma_w, vs + vd, 8)
            req(mfma_c, vd, 3)
            req(st_data, vd, 2)
            if op.replace("_e32", "").replace("_e64", "") not in TRANS:
                req(trans_w, vs, 1)
            req(valu_sw, ss, 2)
            if op.startswith("v_cndmask") and len(toks) < 4:
                req(valu_sw, _regs("vcc"), 2)
            if "permlane" in op or "dpp" in op or "row_" in mods or "quad_perm" in mods:
                req(valu_w, vs, 2)
            if op.startswith("v_readfirstlane") or op.startswith("v_readlane"):
                req(valu_w, vs, 1)
        elif is_vmem or is_ds:
            allr = [_regs(t) for t in toks]
            lds = " lds" in (" " + mods) or op.startswith("global_load_lds")
            is_load = ("load" in op and not lds) or op.startswith("ds_read") or ("atomic" in op and "sc0" in mods)
            if is_load and "atomic" not in op:
                dst = allr[0]
                src = sum(allr[1:], [])
            else:
                src = sum(allr, [])
            vs = [r for r in src if r[0] != "s"]
            ss = [r for r in src if r[0] == "s"]
            req(mfma_w, vs + dst, 8)
            req(mfma_c, dst, 3)
            req(st_data, dst, 1)
            req(valu_sw, ss, 5)
            if lds:
                need = max(need, 1 - (pos - m0_w - 1))
        if need > 0:
            out.append("    s_nop %d" % (need - 1))
            pos += need
            nins += need
        out.append(line)
        if is_mfma:
            for r in dst:
                mfma_w[r] = (pos, dst[0], len(dst))
                valu_w.pop(r, None)
            for r in C:
                mfma_c[r] = pos
        elif is_valu:
            for r in dst:
                if r[0] == "s":
                    valu_sw[r] = pos
                else:
                    valu_w[r] = pos
                    mfma_w.pop(r, None)
                    if op.replace("_e32", "").replace("_e64", "") in TRANS:
                        trans_w[r] = pos
                    else:
                        trans_w.pop(r, None)
        elif is_vmem:
            if "store" in op and ("x3" in op or "x4" in op):
                dr = _regs(toks[0]) if op.startswith("buffer_") else _regs(toks[1])
                for r in dr:
                    st_data[r] = pos
        elif op.startswith("s_"):
            if toks and toks[0] == "m0":
                m0_w = pos
        if op == "s_nop":
            pos += int(toks[0], 0) + 1
        else:
            pos += 1
    if verbose:
        print("hazard pass inserted %d wait states" % nins)
    return out
```

```python
from asmlib import *

WS_Q = 0
WS_K = 4 << 20
WS_V = 8 << 20
WS_ACT = 16 << 20
WS_G = 40 << 20
WS_PART = 48 << 20
WS_SIZE = 268435456

S_X, S_WQKV, S_WO, S_BX, S_W1, S_W2, S_GATE, S_OUT, S_DBG, S_WS = 16, 18, 20, 22, 24, 26, 28, 30, 32, 34
SRD_A, SRD_W, SRD_O = 36, 40, 44
S_MT, S_NT, S_WAVE, S_WR, S_WC = 48, 49, 50, 51, 52
S_SL = 53
S_TMP, S_KA, S_OFFA, S_OFFW, S_CNT, S_ADW, S_WDW, S_T2, S_T3 = 56, 57, 58, 59, 60, 61, 62, 63, 64


STAMPS = False
ABL = set()
WS_STAMP = 200 << 20
S_ST = 70


def stamp(a, idx, real=False):
    if not STAMPS:
        return
    a("s_waitcnt lgkmcnt(0)")
    a("%s s[%d:%d]" % ("s_memrealtime" if real else "s_memtime", S_ST + 2 * idx, S_ST + 2 * idx + 1))
    a("s_waitcnt lgkmcnt(0)")


def stamp_flush(a, n, srd):
    if not STAMPS:
        return
    a("s_lshl_b32 s4, s2, 2")
    a("s_add_u32 s4, s4, s%d" % S_WAVE)
    a("s_lshl_b32 s4, s4, 6")
    a("s_add_u32 s4, s4, 0x%x" % WS_STAMP)
    a("v_mov_b32 v0, 0")
    a("s_mov_b64 exec, 1")
    for i in range(n):
        a("v_mov_b32 v1, s%d" % (S_ST + 2 * i))
        a("buffer_store_dword v1, v0, s[%d:%d], s4 offen offset:%d" % (srd, srd + 3, 4 * i))
        a("s_nop 1")


def load_kernargs(a):
    a("s_load_dwordx16 s[16:31], s[0:1], 0")
    a("s_load_dwordx4 s[32:35], s[0:1], 64")


class G1Cfg:
    def __init__(self, kind, RA=3, split_a=True, dma_pos=None):
        self.kind = kind
        self.RA = RA
        self.split_a = split_a
        self.MU = 8
        if kind == "ffn":
            self.NT = 224
            self.ldw = 7168
            self.hbits = 1
        else:
            self.NT = 192
            self.ldw = 6144
            self.hbits = 2
        self.NU = self.NT // 32
        self.RB = self.NT * 2
        self.CPR = self.NT // 8
        self.nW = (8 * self.RB + 1023) // 1024
        self.GS = self.nW * 1024
        self.HS = 4 * self.GS
        self.WREG = RA * 32768
        self.LDS = self.WREG + 4 * self.HS
        self.NS = 16

    def h(self, k):
        if self.kind == "ffn":
            return (k >> 3) & 1
        return ((k >> 1) & 1) | (((k >> 3) & 1) << 1)

    def seg(self, wc, t):
        if self.kind == "ffn":
            return 7 * wc + t
        return 4 * (t >> 1) + 2 * wc + (t & 1)

    def wpos(self, k, s):
        return (k >> 3) * self.GS + (k & 7) * self.RB + (s ^ self.h(k)) * 32

    def tile_imm(self, t):
        if self.kind == "ffn":
            return (t >> 1) * 64
        return (t >> 1) * 128

    def verify(self):
        for wc in range(2):
            for t in range(self.NU):
                for j in range(2):
                    addrs = []
                    for l in range(64):
                        g, r, cc = l >> 4, (l >> 2) & 3, l & 3
                        k = 8 * g + r + 4 * j
                        a = self.wpos(k, self.seg(wc, t)) + cc * 8
                        base = self.wpos(8 * g + r, self.seg(wc, t & 1)) + cc * 8
                        assert a == base + self.tile_imm(t) + j * 4 * self.RB
                        addrs.append(a)
                    assert check_b64_conflict(addrs) == 1
        for ks in range(2):
            addrs = [((l & 15) * 128 + (((4 * ks + (l >> 4)) ^ (((l & 15) >> 1) & 7)) * 16)) for l in range(64)]
            assert check_b128_conflict(addrs) == 1


V_DA = 224
V_DW = 232
V_AL = 236
V_A = 238
V_W = 240
V_LANE = 242
V_T = 243
V_L16 = 252
A_AF = 0
A_WF = 64


def acc(cfg, t, u):
    return (t * cfg.MU + u) * 4


def gen_prologue(a, cfg):
    T = V_T
    a("s_lshl_b32 s%d, s%d, 19" % (S_TMP, S_MT))
    a("s_add_u32 s%d, s%d, s%d" % (SRD_A, S_X, S_TMP))
    a("s_addc_u32 s%d, s%d, 0" % (SRD_A + 1, S_X + 1))
    a("s_and_b32 s%d, s%d, 0xffff" % (SRD_A + 1, SRD_A + 1))
    a("s_mov_b32 s%d, 0x80000" % (SRD_A + 2))
    a("s_mov_b32 s%d, 0x20000" % (SRD_A + 3))
    if cfg.kind == "ffn":
        wp, colb, tot = S_W1, 448, 1024 * 7168
    else:
        wp, colb, tot = S_WQKV, 128, 1024 * 6144
    a("s_mul_i32 s%d, s%d, %d" % (S_TMP, S_NT, colb))
    a("s_add_u32 s%d, s%d, s%d" % (SRD_W, wp, S_TMP))
    a("s_addc_u32 s%d, s%d, 0" % (SRD_W + 1, wp + 1))
    a("s_and_b32 s%d, s%d, 0xffff" % (SRD_W + 1, SRD_W + 1))
    a("s_sub_u32 s%d, %d, s%d" % (SRD_W + 2, tot, S_TMP))
    a("s_mov_b32 s%d, 0x20000" % (SRD_W + 3))
    a("v_lshrrev_b32 v%d, 3, v%d" % (T, V_LANE))
    a("s_lshl_b32 s%d, s%d, 6" % (S_TMP, S_WAVE))
    a("v_add_u32 v%d, s%d, v%d" % (T, S_TMP, T))
    a("v_lshlrev_b32 v%d, 11, v%d" % (T, T))
    a("v_and_b32 v%d, 7, v%d" % (T + 1, V_LANE))
    a("v_lshrrev_b32 v%d, 4, v%d" % (T + 2, V_LANE))
    a("v_xor_b32 v%d, v%d, v%d" % (T + 3, T + 1, T + 2))
    a("v_xor_b32 v%d, 4, v%d" % (T + 4, T + 3))
    a("v_lshl_add_u32 v%d, v%d, 4, v%d" % (T + 3, T + 3, T))
    a("v_lshl_add_u32 v%d, v%d, 4, v%d" % (T + 4, T + 4, T))
    for i in range(8):
        a("v_add_u32 v%d, 0x%x, v%d" % (V_DA + i, i * 16384 - (i % 4) * 1024, T + 3 + (i & 1)))
    magic = {28: 2341, 24: 2731, 32: 2048}[cfg.CPR]
    for q in range(64 * cfg.nW):
        assert (q * magic) >> 16 == q // cfg.CPR
    a("s_lshl_b32 s%d, s%d, 3" % (S_T2, S_WAVE))
    a("s_mov_b32 s%d, %d" % (S_T3, cfg.ldw))
    for i in range(cfg.nW):
        q, kk, c, k, hh, d = T, T + 1, T + 2, T + 3, T + 4, V_DW + i
        a("v_add_u32 v%d, %d, v%d" % (q, 64 * i, V_LANE))
        a("v_mul_u32_u24 v%d, %d, v%d" % (kk, magic, q))
        a("v_lshrrev_b32 v%d, 16, v%d" % (kk, kk))
        a("v_mul_u32_u24 v%d, %d, v%d" % (c, cfg.CPR, kk))
        a("v_sub_u32 v%d, v%d, v%d" % (c, q, c))
        a("v_add_u32 v%d, s%d, v%d" % (k, S_T2, kk))
        if cfg.kind == "ffn":
            a("v_bfe_u32 v%d, v%d, 3, 1" % (hh, k))
            a("v_lshlrev_b32 v%d, 1, v%d" % (hh, hh))
        else:
            a("v_and_b32 v%d, 2, v%d" % (hh, k))
            a("v_bfe_u32 v%d, v%d, 3, 1" % (T + 5, k))
            a("v_lshl_add_u32 v%d, v%d, 2, v%d" % (hh, T + 5, hh))
        a("v_xor_b32 v%d, v%d, v%d" % (c, c, hh))
        if cfg.kind == "ffn":
            a("v_lshlrev_b32 v%d, 4, v%d" % (c, c))
        else:
            a("v_lshrrev_b32 v%d, 3, v%d" % (T + 5, c))
            a("v_lshlrev_b32 v%d, 11, v%d" % (T + 5, T + 5))
            a("v_and_b32 v%d, 7, v%d" % (c, c))
            a("v_lshl_add_u32 v%d, v%d, 4, v%d" % (c, c, T + 5))
        a("v_mul_lo_u32 v%d, v%d, s%d" % (d, k, S_T3))
        a("v_add_u32 v%d, v%d, v%d" % (d, d, c))
        if i:
            a("v_subrev_u32 v%d, %d, v%d" % (d, 1024 * i, d))
        if 64 * (i + 1) > 8 * cfg.CPR:
            a("v_mov_b32 v%d, 0x70000000" % (T + 5))
            a("v_cmp_gt_u32 vcc, 8, v%d" % kk)
            a("s_nop 1")
            a("v_cndmask_b32 v%d, v%d, v%d, vcc" % (d, T + 5, d))
    m, g, f = T, T + 1, T + 2
    a("v_and_b32 v%d, 15, v%d" % (m, V_LANE))
    a("v_lshrrev_b32 v%d, 4, v%d" % (g, V_LANE))
    a("v_lshrrev_b32 v%d, 1, v%d" % (f, m))
    a("v_xor_b32 v%d, v%d, v%d" % (f, f, g))
    a("s_lshl_b32 s%d, s%d, 14" % (S_TMP, S_WR))
    a("v_lshlrev_b32 v%d, 7, v%d" % (T + 3, m))
    a("v_add_u32 v%d, s%d, v%d" % (T + 3, S_TMP, T + 3))
    a("v_lshl_add_u32 v%d, v%d, 4, v%d" % (V_AL, f, T + 3))
    a("v_xor_b32 v%d, 64, v%d" % (V_AL + 1, V_AL))
    r, cc, hh, b = T + 2, T + 3, T + 4, T + 5
    a("v_bfe_u32 v%d, v%d, 2, 2" % (r, V_LANE))
    a("v_and_b32 v%d, 3, v%d" % (cc, V_LANE))
    if cfg.kind == "ffn":
        a("v_and_b32 v%d, 1, v%d" % (hh, g))
        a("s_mul_i32 s%d, s%d, 7" % (S_TMP, S_WC))
    else:
        a("v_and_b32 v%d, 1, v%d" % (hh, g))
        a("v_lshlrev_b32 v%d, 1, v%d" % (hh, hh))
        a("v_lshrrev_b32 v%d, 1, v%d" % (b, r))
        a("v_or_b32 v%d, v%d, v%d" % (hh, hh, b))
        a("s_lshl_b32 s%d, s%d, 1" % (S_TMP, S_WC))
    a("v_mul_u32_u24 v%d, %d, v%d" % (b, cfg.GS, g))
    a("v_mul_u32_u24 v%d, %d, v%d" % (T + 6, cfg.RB, r))
    a("v_add_u32 v%d, v%d, v%d" % (b, b, T + 6))
    a("v_lshl_add_u32 v%d, v%d, 3, v%d" % (b, cc, b))
    a("v_add_u32 v%d, 0x%x, v%d" % (b, cfg.WREG, b))
    for p in range(2):
        a("s_add_u32 s%d, s%d, %d" % (S_T2, S_TMP, p))
        a("v_xor_b32 v%d, s%d, v%d" % (T + 6, S_T2, hh))
        a("v_lshl_add_u32 v%d, v%d, 5, v%d" % (V_W + p, T + 6, b))
    a("s_lshl_b32 s%d, s%d, 13" % (S_ADW, S_WAVE))
    a("s_mul_i32 s%d, s%d, %d" % (S_WDW, S_WAVE, cfg.GS))
    a("s_add_u32 s%d, s%d, 0x%x" % (S_WDW, S_WDW, cfg.WREG))


class G1Gen:
    def __init__(self, cfg):
        self.cfg = cfg
        self.vm = Counter(63)
        self.lg = Counter(15)

    def dma_w(self, j):
        cfg = self.cfg
        out = []
        pre = ["s_add_u32 m0, s%d, 0x%x" % (S_WDW, (j % 4) * cfg.HS)]
        for i in range(cfg.nW):
            ins = "buffer_load_dwordx4 v%d, s[%d:%d], s%d offen%s lds" % (
                V_DW + i, SRD_W, SRD_W + 3, S_OFFW, (" offset:%d" % (1024 * i)) if i else "")
            out.append((pre if i == 0 else [], ins, ("W", j + 4)))
        return out

    def dma_a(self, stage, half, slot_sreg):
        out = []
        pre = ["s_add_u32 m0, s%d, s%d" % (S_ADW, slot_sreg)]
        if half:
            pre.append("s_add_u32 m0, m0, 0x1000")
        for i in range(4):
            ins = "buffer_load_dwordx4 v%d, s[%d:%d], s%d offen%s lds" % (
                V_DA + 4 * half + i, SRD_A, SRD_A + 3, S_OFFA, (" offset:%d" % (1024 * i)) if i else "")
            out.append((pre if i == 0 else [], ins, ("A", stage)))
        return out

    def step(self, a, j, mfma=True, reads=True):
        cfg = self.cfg
        RA = cfg.RA
        s, ks = j // 2, j % 2
        MU, NU = cfg.MU, cfg.NU
        nm = MU * NU
        side = [[] for _ in range(nm + 1)]

        def put(i, item):
            side[min(i, nm)].append(item)

        pre = []
        if ks == 0:
            pre.append("s_mov_b32 s%d, s%d" % (S_TMP, S_SL))
            for q in range(RA - 1):
                pre.append("s_mov_b32 s%d, s%d" % (S_SL + q, S_SL + q + 1))
            pre.append("s_mov_b32 s%d, s%d" % (S_SL + RA - 1, S_TMP))
        for i, p in enumerate(pre):
            put(1 + i, ("s", p))
        nks = (j + 1) % 2
        rd_slot = S_SL + (0 if ks == 0 else 1)
        put(len(pre) + 1, ("s", "v_add_u32 v%d, s%d, v%d" % (V_A + nks, rd_slot, V_AL + nks)))
        put(len(pre) + 2, ("s", "s_add_u32 s%d, s%d, 0x%x" % (S_OFFW, S_OFFW, 32 * cfg.ldw)))
        if ks == 1:
            put(3, ("s", "s_add_u32 s%d, s%d, 128" % (S_KA, S_KA)))
            put(4, ("s", "s_cmp_lt_u32 s%d, 2048" % S_KA))
            put(4, ("s", "s_cselect_b32 s%d, s%d, 0x80000000" % (S_OFFA, S_KA)))
        put(MU, ("bar", j))
        for t in range(NU):
            for jj in range(2):
                put((t + 1) * MU + jj, ("rw", t, jj))
        for u in range(MU):
            put(MU + 3 + 2 * u, ("ra", u))
        dm = []
        if j + 4 >= 0:
            dm += self.dma_w(j)
        if cfg.split_a:
            if ks == 1 and s + RA >= 0:
                dm += self.dma_a(s + RA, 0, S_SL)
            if ks == 0 and s - 1 + RA >= 0:
                dm += self.dma_a(s - 1 + RA, 1, S_SL + RA - 1)
        else:
            if ks == 1 and s + RA >= 0:
                dm += self.dma_a(s + RA, 0, S_SL) + self.dma_a(s + RA, 1, S_SL)
        n = len(dm)
        first = MU + 2
        span = nm - first - 2
        for i, d in enumerate(dm):
            put(first + (i * span) // max(n, 1), ("dma", d))

        fs = j % 2
        for i in range(nm + 1):
            for item in side[i]:
                kind = item[0]
                if kind == "s":
                    a(item[1])
                elif kind == "bar":
                    if not reads:
                        continue
                    jn = j + 1
                    nv = self.vm.need(lambda tg: (tg[0] == "W" and tg[1] <= jn) or (tg[0] == "A" and tg[1] <= jn // 2))
                    nl = self.lg.need(lambda tg: True)
                    w = waitcnt(nv, nl)
                    if w:
                        a(w)
                    if not ("nobar" in ABL and j >= 0):
                        a("s_barrier")
                elif kind == "rw":
                    if not reads or ("noread" in ABL and j >= 0):
                        continue
                    t, jj = item[1], item[2]
                    off = ((j + 1) % 4) * cfg.HS + cfg.tile_imm(t) + jj * 4 * cfg.RB
                    a("ds_read_b64_tr_b16 %s, v%d offset:%d" % (ar(A_WF + 4 * t + 2 * jj, 2), V_W + (t & 1), off))
                    self.lg.issue(("W", j + 1, t))
                elif kind == "ra":
                    if not reads or ("noread" in ABL and j >= 0):
                        continue
                    u = item[1]
                    a("ds_read_b128 %s, v%d offset:%d" % (ar(A_AF + 32 * (1 - fs) + 4 * u, 4), V_A + nks, 2048 * u))
                    self.lg.issue(("A", j + 1, u))
                elif kind == "dma":
                    pre_i, ins, tag = item[1]
                    if "nodma" in ABL and j >= 0:
                        continue
                    for p in pre_i:
                        a(p)
                    if pre_i:
                        a("s_nop 0")
                    a(ins)
                    self.vm.issue(tag)
            if i < nm and mfma and "nomfma" not in ABL:
                t, u = i // MU, i % MU
                nl = self.lg.need(lambda tg: tg[1] == j and ((tg[0] == "W" and tg[2] == t) or (tg[0] == "A" and tg[2] == u)))
                if nl is not None:
                    a(waitcnt(None, nl))
                d = vr(acc(cfg, t, u), 4)
                wf = ar(A_WF + 4 * t, 4)
                af = ar(A_AF + 32 * fs + 4 * u, 4)
                if cfg.kind == "qkv" and t >= 4:
                    a("v_mfma_f32_16x16x32_bf16 %s, %s, %s, %s" % (d, af, wf, d))
                else:
                    a("v_mfma_f32_16x16x32_bf16 %s, %s, %s, %s" % (d, wf, af, d))


def retag(cnt, dj):
    pass


def gen_main(a, cfg, name):
    g = G1Gen(cfg)
    RA = cfg.RA
    first = -2 * RA + 1 if cfg.split_a else -2 * RA + 1
    first = min(first, -4)
    s0 = first // 2
    if first % 2 == 0:
        base = s0 - 1
    else:
        base = s0
    for q in range(RA):
        a("s_mov_b32 s%d, 0x%x" % (S_SL + q, ((base + q) % RA) * 32768))
    a("s_mov_b32 s%d, 0x%x" % (S_OFFW, ((first - 1 + 4) * 32 * cfg.ldw) & 0xffffffff))
    fs1 = first if first % 2 == 1 else first + 1
    a("s_mov_b32 s%d, 0x%x" % (S_KA, ((fs1 // 2 + RA - 1) * 128) & 0xffffffff))
    a("s_mov_b32 s%d, 0" % S_OFFA)
    for j in range(first, -1):
        g.step(a, j, mfma=False, reads=False)
    for i in range(cfg.MU * cfg.NU * 4):
        a("v_mov_b32 v%d, 0" % i)
    g.step(a, -1, mfma=False, reads=True)
    stamp(a, 2)
    a("s_mov_b32 s%d, %d" % (S_CNT, cfg.NS // 2))
    bodies = []
    for it in range(3):
        b = Asm()
        for j in range(4 * it, 4 * it + 4):
            g.step(b, j)
        bodies.append(b.text())
    if ABL:
        bodies[0] = bodies[2]
    else:
        assert bodies[0] == bodies[1] == bodies[2], "loop body not periodic"
    a.raw(".p2align 6")
    a.label("L_%s_loop" % name)
    a.raw(bodies[0].rstrip("\n"))
    a("s_sub_u32 s%d, s%d, 1" % (S_CNT, S_CNT))
    a("s_cmp_lg_u32 s%d, 0" % S_CNT)
    a("s_cbranch_scc1 L_%s_loop" % name)
    a("s_nop 15")
    stamp(a, 3)


def srd_ws(a, srd):
    a("s_mov_b32 s%d, s%d" % (srd, S_WS))
    a("s_and_b32 s%d, s%d, 0xffff" % (srd + 1, S_WS + 1))
    a("s_mov_b32 s%d, 0x%x" % (srd + 2, WS_SIZE))
    a("s_mov_b32 s%d, 0x20000" % (srd + 3))


def pack_pair(a, r0, r1, relu):
    a("v_cvt_pk_bf16_f32 v%d, v%d, v%d" % (r0, r0, r0 + 1))
    a("v_cvt_pk_bf16_f32 v%d, v%d, v%d" % (r0 + 1, r0 + 2, r0 + 3))
    a("v_cvt_pk_bf16_f32 v%d, v%d, v%d" % (r0 + 2, r1, r1 + 1))
    a("v_cvt_pk_bf16_f32 v%d, v%d, v%d" % (r0 + 3, r1 + 2, r1 + 3))
    if relu:
        for i in range(4):
            a("v_pk_max_i16 v%d, v%d, 0" % (r0 + i, r0 + i))


import struct, math
QSCALE = struct.unpack("<I", struct.pack("<f", 32 ** -0.5 * math.log2(math.e)))[0]
V_GX = 192
V_GW = 224


def gate_loads(a):
    a("s_lshl_b32 s%d, s%d, 15" % (S_T2, S_NT))
    a("s_lshl_b32 s%d, s%d, 13" % (S_T3, S_WAVE))
    a("s_add_u32 s%d, s%d, s%d" % (S_T2, S_T2, S_T3))
    a("s_mov_b32 s%d, s%d" % (SRD_W, S_GATE))
    a("s_and_b32 s%d, s%d, 0xffff" % (SRD_W + 1, S_GATE + 1))
    a("s_mov_b32 s%d, 2048" % (SRD_W + 2))
    for h in range(2):
        a("buffer_load_dwordx4 %s, v%d, s[%d:%d], 0 offen offset:%d" % (vr(V_GW + 4 * h, 4), V_L16, SRD_W, SRD_W + 3, 1024 * h))
    for i in range(4):
        if i == 2:
            a("s_add_u32 s%d, s%d, 0x1000" % (S_T2, S_T2))
        for h in range(2):
            a("buffer_load_dwordx4 %s, v%d, s[%d:%d], s%d offen offset:%d" % (
                vr(V_GX + 8 * i + 4 * h, 4), V_L16, SRD_A, SRD_A + 3, S_T2, (i % 2) * 2048 + 1024 * h))


def gate_compute(a):
    b = Asm()
    b("s_waitcnt vmcnt(0)")
    G = 0
    for j in range(8):
        b("v_lshlrev_b32 v%d, 16, v%d" % (G + 2 * j, V_GW + j))
        b("v_and_b32 v%d, 0xffff0000, v%d" % (G + 2 * j + 1, V_GW + j))
    R = 16
    t = 20
    b("v_mov_b32 v%d, 0x3f803f80" % 30)
    for i in range(4):
        b("v_mov_b32 v%d, 0" % (R + i))
    for j in range(8):
        for i in range(4):
            x = V_GX + 8 * i + j
            p = t + 2 * i
            b("v_lshlrev_b32 v%d, 16, v%d" % (p, x))
            b("v_and_b32 v%d, 0xffff0000, v%d" % (p + 1, x))
            b("v_mul_f32 v%d, v%d, v%d" % (p, p, G + 2 * j))
            b("v_mul_f32 v%d, v%d, v%d" % (p + 1, p + 1, G + 2 * j + 1))
            b("v_cvt_pk_bf16_f32 v%d, v%d, v%d" % (p, p, p + 1))
            b("v_lshlrev_b32 v%d, 16, v%d" % (p + 1, p))
            b("v_and_b32 v%d, 0xffff0000, v%d" % (p, p))
            b("v_add_f32 v%d, v%d, v%d" % (R + i, R + i, p + 1))
            b("v_add_f32 v%d, v%d, v%d" % (R + i, R + i, p))
    b("v_permlane32_swap_b32 v%d, v%d" % (R, R + 1))
    b("v_permlane32_swap_b32 v%d, v%d" % (R + 2, R + 3))
    b("v_add_f32 v%d, v%d, v%d" % (R, R, R + 1))
    b("v_add_f32 v%d, v%d, v%d" % (R + 2, R + 2, R + 3))
    b("v_permlane16_swap_b32 v%d, v%d" % (R, R + 2))
    b("v_add_f32 v%d, v%d, v%d" % (R, R, R + 2))
    for sh in (8, 4, 2, 1):
        b("v_add_f32_dpp v%d, v%d, v%d row_ror:%d row_mask:0xf bank_mask:0xf" % (R, R, R, sh))
    b("v_cvt_pk_bf16_f32 v%d, v%d, v%d" % (R, R, R))
    b("v_and_b32 v%d, 0xffff0000, v%d" % (R, R))
    b("v_mul_f32 v%d, 0xbfb8aa3b, v%d" % (R, R))
    b("v_exp_f32 v%d, v%d" % (R, R))
    b("v_add_f32 v%d, 1.0, v%d" % (R, R))
    b("v_rcp_f32 v%d, v%d" % (R, R))
    b("v_cvt_pk_bf16_f32 v%d, v%d, v%d" % (R, R, R))
    b("v_and_b32 v%d, 0xffff0000, v%d" % (R, R))
    b("v_sub_f32 v%d, 1.0, v%d" % (R + 1, R))
    b("v_cvt_pk_bf16_f32 v%d, v%d, v%d" % (R + 1, R + 1, R + 1))
    b("v_and_b32 v%d, 0xffff0000, v%d" % (R + 1, R + 1))
    b("v_bfe_u32 v%d, v%d, 4, 1" % (t, V_LANE))
    b("v_bfe_u32 v%d, v%d, 5, 1" % (t + 1, V_LANE))
    b("v_lshlrev_b32 v%d, 3, v%d" % (t, t))
    b("v_lshl_add_u32 v%d, v%d, 2, v%d" % (t, t + 1, t))
    b("s_lshl_b32 s%d, s%d, 10" % (S_T2, S_MT))
    b("s_lshl_b32 s%d, s%d, 6" % (S_T3, S_NT))
    b("s_add_u32 s%d, s%d, s%d" % (S_T2, S_T2, S_T3))
    b("s_lshl_b32 s%d, s%d, 4" % (S_T3, S_WAVE))
    b("s_add_u32 s%d, s%d, s%d" % (S_T2, S_T2, S_T3))
    b("s_add_u32 s%d, s%d, 0x%x" % (S_T2, S_T2, WS_G))
    b("s_add_u32 s%d, s%d, 0x2000" % (S_T3, S_T2))
    b("s_mov_b32 exec_lo, 0x00010001")
    b("s_mov_b32 exec_hi, 0x00010001")
    b("buffer_store_dword v%d, v%d, s[%d:%d], s%d offen" % (R, t, SRD_O, SRD_O + 3, S_T2))
    b("buffer_store_dword v%d, v%d, s[%d:%d], s%d offen" % (R + 1, t, SRD_O, SRD_O + 3, S_T3))
    b("s_mov_b64 exec, -1")
    b.lines = fix_hazards(b.lines)
    a.extend(b)


def gen_epilogue_qkv(a, cfg):
    srd_ws(a, SRD_O)
    a("v_lshlrev_b32 v%d, 4, v%d" % (V_L16, V_LANE))
    a("s_lshl_b32 s%d, s%d, 1" % (S_TMP, S_NT))
    a("s_add_u32 s%d, s%d, s%d" % (S_TMP, S_TMP, S_WC))
    a("s_lshl_b32 s%d, s%d, 17" % (S_TMP, S_TMP))
    a("s_lshl_b32 s%d, s%d, 14" % (S_T2, S_MT))
    a("s_add_u32 s%d, s%d, s%d" % (S_TMP, S_TMP, S_T2))
    a("s_lshl_b32 s%d, s%d, 13" % (S_T2, S_WR))
    a("s_add_u32 s%d, s%d, s%d" % (S_TMP, S_TMP, S_T2))
    gate_loads(a)
    a("s_mov_b32 s%d, 0x%x" % (S_T3, QSCALE))
    for which, base in ((0, WS_Q), (1, WS_K)):
        for u in range(8):
            r0, r1 = acc(cfg, 2 * which, u), acc(cfg, 2 * which + 1, u)
            if which == 0:
                for r in (r0, r1):
                    for i in range(4):
                        a("v_mul_f32 v%d, s%d, v%d" % (r + i, S_T3, r + i))
            pack_pair(a, r0, r1, False)
            if u % 4 == 0:
                a("s_add_u32 s%d, s%d, 0x%x" % (S_T2, S_TMP, base + u * 1024))
            a("buffer_store_dwordx4 %s, v%d, s[%d:%d], s%d offen offset:%d" % (
                vr(r0, 4), V_L16, SRD_O, SRD_O + 3, S_T2, (u % 4) * 1024))
    for p in range(4):
        for dt in range(2):
            r0, r1 = acc(cfg, 4 + dt, 2 * p), acc(cfg, 4 + dt, 2 * p + 1)
            pack_pair(a, r0, r1, False)
            off = p * 2048 + dt * 1024
            if off % 4096 == 0:
                a("s_add_u32 s%d, s%d, 0x%x" % (S_T2, S_TMP, WS_V + off))
            a("buffer_store_dwordx4 %s, v%d, s[%d:%d], s%d offen offset:%d" % (
                vr(r0, 4), V_L16, SRD_O, SRD_O + 3, S_T2, off % 4096))
    gate_compute(a)


def gen_epilogue_ffn(a, cfg):
    srd_ws(a, SRD_O)
    a("v_lshlrev_b32 v%d, 4, v%d" % (V_L16, V_LANE))
    a("s_mul_i32 s%d, s%d, 144" % (S_TMP, S_MT))
    a("s_mul_i32 s%d, s%d, 7" % (S_T2, S_NT))
    a("s_add_u32 s%d, s%d, s%d" % (S_TMP, S_TMP, S_T2))
    a("s_add_u32 s%d, s%d, 32" % (S_TMP, S_TMP))
    a("s_lshl_b32 s%d, s%d, 14" % (S_TMP, S_TMP))
    a("s_lshl_b32 s%d, s%d, 13" % (S_T2, S_WR))
    a("s_add_u32 s%d, s%d, s%d" % (S_TMP, S_TMP, S_T2))
    a("s_add_u32 s%d, s%d, 0x%x" % (S_TMP, S_TMP, WS_ACT))
    a("s_cmp_eq_u32 s%d, 0" % S_WC)
    a("s_cbranch_scc0 L_ffn_epi1")
    for wc in range(2):
        if wc == 1:
            a.label("L_ffn_epi1")
        t = 0
        while t < 7:
            T = 7 * wc + t
            if T % 2 == 0 and t + 1 < 7:
                pr = T >> 1
                for u in range(8):
                    r0, r1 = acc(cfg, t, u), acc(cfg, t + 1, u)
                    pack_pair(a, r0, r1, True)
                    if u % 4 == 0:
                        a("s_add_u32 s%d, s%d, 0x%x" % (S_T2, S_TMP, pr * 16384 + u * 1024))
                    a("buffer_store_dwordx4 %s, v%d, s[%d:%d], s%d offen offset:%d" % (
                        vr(r0, 4), V_L16, SRD_O, SRD_O + 3, S_T2, (u % 4) * 1024))
                t += 2
            else:
                pr = T >> 1
                for u in range(8):
                    r0 = acc(cfg, t, u)
                    a("v_cvt_pk_bf16_f32 v%d, v%d, v%d" % (r0, r0, r0 + 1))
                    a("v_cvt_pk_bf16_f32 v%d, v%d, v%d" % (r0 + 1, r0 + 2, r0 + 3))
                    a("v_pk_max_i16 v%d, v%d, 0" % (r0, r0))
                    a("v_pk_max_i16 v%d, v%d, 0" % (r0 + 1, r0 + 1))
                    if u % 4 == 0:
                        a("s_add_u32 s%d, s%d, 0x%x" % (S_T2, S_TMP, pr * 16384 + u * 1024))
                    a("buffer_store_dwordx2 %s, v%d, s[%d:%d], s%d offen offset:%d" % (
                        vr(r0, 2), V_L16, SRD_O, SRD_O + 3, S_T2, (u % 4) * 1024 + 8 * (T % 2)))
                t += 1
        stamp(a, 4)
        if STAMPS:
            a("s_waitcnt vmcnt(0)")
        stamp(a, 5)
        stamp(a, 6, True)
        stamp_flush(a, 7, SRD_O)
        a("s_endpgm")


def gen_k1(name="k1_kernel", RA=3, split_a=True):
    a = Asm()
    a.raw(kernel_header(name).rstrip("\n"))
    a("s_cmp_ge_u32 s2, 256")
    a("s_cbranch_scc1 L_k1_exit")
    stamp(a, 0, True)
    stamp(a, 1)
    load_kernargs(a)
    a("v_and_b32 v%d, 63, v0" % V_LANE)
    a("v_lshrrev_b32 v1, 6, v0")
    a("s_nop 0")
    a("v_readfirstlane_b32 s%d, v1" % S_WAVE)
    a("s_and_b32 s3, s2, 7")
    a("s_lshr_b32 s4, s2, 3")
    a("s_and_b32 s%d, s4, 7" % S_MT)
    a("s_lshr_b32 s4, s4, 3")
    a("s_and_b32 s5, s4, 1")
    a("s_lshl_b32 s3, s3, 1")
    a("s_add_u32 s%d, s3, s5" % S_NT)
    a("s_lshr_b32 s%d, s%d, 1" % (S_WR, S_WAVE))
    a("s_and_b32 s%d, s%d, 1" % (S_WC, S_WAVE))
    a("s_waitcnt lgkmcnt(0)")
    a("s_cmp_ge_u32 s4, 2")
    a("s_cbranch_scc1 L_k1_ffn")
    cq = G1Cfg("qkv", RA, split_a)
    cq.verify()
    gen_prologue(a, cq)
    gen_main(a, cq, "k1q")
    gen_epilogue_qkv(a, cq)
    stamp(a, 4)
    if STAMPS:
        a("s_waitcnt vmcnt(0)")
    stamp(a, 5)
    stamp(a, 6, True)
    stamp_flush(a, 7, SRD_O)
    a.label("L_k1_exit")
    a("s_endpgm")
    a.label("L_k1_ffn")
    cf = G1Cfg("ffn", RA, split_a)
    cf.verify()
    gen_prologue(a, cf)
    gen_main(a, cf, "k1f")
    gen_epilogue_ffn(a, cf)
    lds = max(cq.LDS, cf.LDS)
    return a.text(), kernel_desc(name, 256 + 92, 256, 100), lds


if __name__ == "__main__":
    t, d, lds = gen_k1()
    print(t)
    print(d)
    print(lds)
```

```python
from asmlib import *
from gen_k1 import (WS_Q, WS_K, WS_V, WS_ACT, WS_G, WS_SIZE, S_WS, load_kernargs, srd_ws, stamp, stamp_flush)
import gen_k1

SRD = 36
S_WAVE, S_HEAD, S_MT, S_T0, S_TMP, S_T2, S_OFF = 50, 51, 52, 53, 54, 55, 56
BIG = 0xf149f2ca

V_S = 0
V_P = 32
V_O = 40
V_SUM = 56
V_CQ = 64
V_CA = 72
V_CB = 80
V_ONE = 88
V_MX = 92
V_G = 94
V_L16 = 96
V_RD = 97
V_NM = 98
V_T = 100
V_MA = 108
NV = 112
A_K = 0
A_V = 72
A_Q = 96
NA = 104


def S(buf, q, kt):
    return V_S + buf * 16 + q * 8 + kt * 4


def tiles(t):
    if t == 0:
        return [(0, 0, "A"), (0, 1, "Q"), (1, 1, "A")]
    if t == 8:
        return [(0, 0, "B"), (1, 0, "Q"), (1, 1, "B")]
    return [(0, 0, "Q"), (0, 1, "Q"), (1, 0, "Q"), (1, 1, "Q")]


def gen_k2(name="k2_kernel"):
    a = Asm()
    fix = Asm()
    a.raw(kernel_header(name).rstrip("\n"))
    a("s_cmp_ge_u32 s2, 256")
    a("s_cbranch_scc1 L_k2_exit")
    stamp(a, 0, True)
    stamp(a, 1)
    a("s_load_dwordx2 s[34:35], s[0:1], 72")
    a("v_lshrrev_b32 v1, 6, v0")
    a("v_and_b32 v0, 63, v0")
    a("v_readfirstlane_b32 s%d, v1" % S_WAVE)
    a("v_lshlrev_b32 v%d, 4, v0" % V_L16)
    a("s_and_b32 s3, s2, 7")
    a("s_lshr_b32 s4, s2, 3")
    a("s_and_b32 s5, s4, 3")
    a("s_lshl_b32 s3, s3, 2")
    a("s_add_u32 s%d, s3, s5" % S_HEAD)
    a("s_lshr_b32 s%d, s4, 2" % S_MT)
    a("s_lshl_b32 s%d, s%d, 17" % (S_OFF, S_HEAD))
    a("s_lshl_b32 s%d, s%d, 14" % (S_TMP, S_MT))
    a("s_add_u32 s%d, s%d, s%d" % (S_OFF, S_OFF, S_TMP))
    a("s_lshl_b32 s%d, s%d, 12" % (S_T2, S_WAVE))
    a("s_add_u32 s3, s%d, s%d" % (S_TMP, S_T2))
    a("s_cmp_lt_u32 s3, 0x4000")
    a("s_cselect_b32 s4, 0, 0x4000")
    a("s_add_u32 s5, s%d, s%d" % (S_OFF, S_T2))
    a("s_sub_u32 s5, s5, s4")
    a("s_add_u32 s6, s5, 0x%x" % WS_K)
    a("s_add_u32 s7, s5, 0x%x" % WS_V)
    a("s_lshl_b32 s8, s%d, 11" % S_WAVE)
    a("s_add_u32 s8, s8, s%d" % S_OFF)
    a("s_mov_b32 m0, s%d" % S_T2)
    a("s_waitcnt lgkmcnt(0)")
    srd_ws(a, SRD)
    for i in range(4):
        a("buffer_load_dwordx4 v%d, s[%d:%d], s6 offen offset:%d lds" % (V_L16, SRD, SRD + 3, 1024 * i))
    for q in range(2):
        a("buffer_load_dwordx4 %s, v%d, s[%d:%d], s8 offen offset:%d" % (ar(A_Q + 4 * q, 4), V_L16, SRD, SRD + 3, 1024 * q))
    a("s_add_u32 m0, s%d, 0x8000" % S_T2)
    a("v_and_b32 v%d, 15, v0" % V_T)
    a("s_lshl_b32 s9, s%d, 10" % S_MT)
    a("s_lshl_b32 s10, s%d, 7" % S_WAVE)
    a("s_add_u32 s9, s9, s10")
    a("s_add_u32 s9, s9, 0x%x" % WS_G)
    for i in range(4):
        a("buffer_load_dwordx4 v%d, s[%d:%d], s7 offen offset:%d lds" % (V_L16, SRD, SRD + 3, 1024 * i))
    a("v_lshlrev_b32 v%d, 2, v%d" % (V_T + 1, V_T))
    for q in range(2):
        a("buffer_load_dword v%d, v%d, s[%d:%d], s9 offen offset:%d" % (V_G + q, V_T + 1, SRD, SRD + 3, 64 * q))
    a("s_lshl_b32 s3, s%d, 3" % S_MT)
    a("s_add_u32 s3, s3, s%d" % S_WAVE)
    a("s_sub_i32 s%d, 8, s3" % S_T0)
    a("s_max_i32 s%d, s%d, 0" % (S_T0, S_T0))
    a("s_lshl_b32 s3, s%d, 11" % S_WAVE)
    a("v_add_u32 v%d, s3, v%d" % (V_RD, V_L16))
    a("v_lshrrev_b32 v%d, 4, v0" % (V_T + 2))
    a("v_lshlrev_b32 v%d, 2, v%d" % (V_T + 2, V_T + 2))
    a("v_sub_u32 v%d, v%d, v%d" % (V_MA, V_T, V_T + 2))
    a("v_mov_b32 v%d, 0x%x" % (V_T + 3, BIG))
    a("s_cmp_eq_u32 s%d, 0" % S_T0)
    a("s_cselect_b32 s11, 0, 0x%x" % BIG)
    a("v_mov_b32 v%d, s11" % (V_T + 4))
    for i in range(4):
        a("v_cmp_lt_i32 s[%d:%d], v%d, %d" % (60 + 2 * i, 61 + 2 * i, V_MA, i))
    for i in range(4):
        a("v_mov_b32 v%d, 0x3f803f80" % (V_ONE + i))
        a("v_mov_b32 v%d, 0x%x" % (V_CQ + i, BIG))
    for i in range(4):
        a("v_cndmask_b32 v%d, v%d, v%d, s[%d:%d]" % (V_CA + i, V_T + 3, V_T + 4, 60 + 2 * i, 61 + 2 * i))
        a("v_cndmask_b32 v%d, 0, v%d, s[%d:%d]" % (V_CB + i, V_T + 3, 60 + 2 * i, 61 + 2 * i))
    for q in range(2):
        a("v_mov_b32 v%d, 0x%x" % (V_MX + q, BIG))
    stamp(a, 2)
    a("s_waitcnt vmcnt(6)")
    a("s_barrier")
    lg = Counter(15)

    def rdk(i):
        a("ds_read_b128 %s, v%d offset:%d" % (ar(A_K + 4 * i, 4), V_RD, 1024 * i))
        lg.issue(("K", i))

    def rdv(t):
        for dt in range(2):
            a("ds_read_b128 %s, v%d offset:%d" % (ar(A_V + 8 * (t % 3) + 4 * dt, 4), V_RD, 32768 + 2048 * t + 1024 * dt))
            lg.issue(("V", t, dt))

    def wait(pred):
        n = lg.need(pred)
        if n is not None:
            a(waitcnt(None, n))

    def fixup(pas, t):
        a("s_cmp_eq_u32 s%d, %d" % (S_T0, t))
        a("s_cbranch_scc1 L_k2_f%d_%d" % (pas, t))
        a.label("L_k2_r%d_%d" % (pas, t))
        fix.label("L_k2_f%d_%d" % (pas, t))
        fix("s_nop 1")
        if pas == 1:
            for i in range(4):
                fix("v_mov_b32 v%d, 0" % (V_CQ + i))
        else:
            for q in range(2):
                for i in range(4):
                    fix("v_mov_b32 v%d, v%d" % (V_CQ + 4 * q + i, V_NM + q))
        fix("s_nop 0")
        fix("s_branch L_k2_r%d_%d" % (pas, t))

    def qk(t, q, kt, ct, pas):
        c = {"Q": V_CQ, "A": V_CA, "B": V_CB}[ct] + (4 * q if pas == 2 else 0)
        wait(lambda tg: tg[0] == "K" and tg[1] == 2 * t + kt)
        a("v_mfma_f32_16x16x32_bf16 %s, %s, %s, %s" % (vr(S(t & 1, q, kt), 4), ar(A_K + 4 * (2 * t + kt), 4),
                                                      ar(A_Q + 4 * q, 4), vr(c, 4)))

    for i in range(8):
        rdk(i)
    nk = 8
    for t in range(10):
        ms = tiles(t) if t < 9 else []
        vs = []
        if t >= 1:
            for (q, kt, _) in tiles(t - 1):
                b = S((t - 1) & 1, q, kt)
                vs.append("v_max3_f32 v%d, v%d, v%d, v%d" % (V_MX + q, V_MX + q, b, b + 1))
                vs.append("v_max3_f32 v%d, v%d, v%d, v%d" % (V_MX + q, V_MX + q, b + 2, b + 3))
        if t < 9:
            fixup(1, t)
        for i, (q, kt, ct) in enumerate(ms):
            qk(t, q, kt, ct, 1)
            if nk < 18 and i < 2:
                rdk(nk)
                nk += 1
            if i >= 1:
                for _ in range(3):
                    if vs:
                        a(vs.pop(0))
        for v in vs:
            a(v)
    a("s_waitcnt vmcnt(0)")
    a("s_barrier")
    rdv(0)
    rdv(1)
    T = V_T
    for q in range(2):
        a("v_mov_b32 v%d, v%d" % (T + q, V_MX + q))
    for q in range(2):
        a("v_permlane32_swap_b32 v%d, v%d" % (V_MX + q, T + q))
    for q in range(2):
        a("v_max_f32 v%d, v%d, v%d" % (V_MX + q, V_MX + q, T + q))
    for q in range(2):
        a("v_mov_b32 v%d, v%d" % (T + q, V_MX + q))
    for q in range(2):
        a("v_permlane16_swap_b32 v%d, v%d" % (V_MX + q, T + q))
    for q in range(2):
        a("v_max_f32 v%d, v%d, v%d" % (V_MX + q, V_MX + q, T + q))
    for q in range(2):
        a("v_sub_f32 v%d, 0, v%d" % (V_NM + q, V_MX + q))
    a("s_cmp_eq_u32 s%d, 0" % S_T0)
    a("s_cselect_b64 vcc, -1, 0")
    for q in range(2):
        a("v_cndmask_b32 v%d, v%d, v%d, vcc" % (T + q, V_T + 3, V_NM + q))
    for q in range(2):
        for i in range(4):
            a("v_cndmask_b32 v%d, v%d, v%d, s[%d:%d]" % (V_CA + 4 * q + i, V_T + 3, T + q, 60 + 2 * i, 61 + 2 * i))
            a("v_cndmask_b32 v%d, v%d, v%d, s[%d:%d]" % (V_CB + 4 * q + i, V_NM + q, V_T + 3, 60 + 2 * i, 61 + 2 * i))
            a("v_mov_b32 v%d, v%d" % (V_CQ + 4 * q + i, V_T + 3))
    a("v_mov_b32 v%d, 0" % (V_P + 4))
    a("v_mov_b32 v%d, 0" % (V_P + 5))
    stamp(a, 3)
    fixup(2, 0)
    for (q, kt, ct) in tiles(0):
        qk(0, q, kt, ct, 2)

    def pv(t, q):
        out = []
        for dt in range(2):
            def f(dt=dt):
                wait(lambda tg: tg[0] == "V" and tg[1] == t and tg[2] == dt)
                d = vr(V_O + 8 * q + 4 * dt, 4)
                a("v_mfma_f32_16x16x32_bf16 %s, %s, %s, %s" % (d, ar(A_V + 8 * (t % 3) + 4 * dt, 4), vr(V_P + 4 * q, 4),
                                                              d if t > 0 else "0"))
            out.append(f)

        def g():
            d = vr(V_SUM + 4 * q, 4)
            a("v_mfma_f32_16x16x32_bf16 %s, %s, %s, %s" % (d, vr(V_ONE, 4), vr(V_P + 4 * q, 4), d if t > 0 else "0"))
        out.append(g)
        return out

    for t in range(9):
        tl = tiles(t)
        ev = {0: [], 1: []}
        cv = {0: [], 1: []}
        for (q, kt, _) in tl:
            b = S(t & 1, q, kt)
            for i in range(4):
                ev[q].append("v_exp_f32 v%d, v%d" % (b + i, b + i))
            for i in range(2):
                cv[q].append("v_cvt_pk_bf16_f32 v%d, v%d, v%d" % (V_P + 4 * q + 2 * kt + i, b + 2 * i, b + 2 * i + 1))
        if t == 8:
            cv[0].append("v_mov_b32 v%d, 0" % (V_P + 2))
            cv[0].append("v_mov_b32 v%d, 0" % (V_P + 3))
        m1 = pv(t - 1, 1) if t > 0 else []
        if t < 8:
            m1.append(lambda t=t: fixup(2, t + 1))
            for (q, kt, ct) in tiles(t + 1):
                m1.append(lambda q=q, kt=kt, ct=ct, t=t: qk(t + 1, q, kt, ct, 2))
        v1 = ev[0] + cv[0] + ev[1][:2]
        v2 = ev[1][2:] + cv[1]
        m2 = pv(t, 0)
        for lst_m, lst_v in ((m1, v1), (m2, v2)):
            nm_, nv_ = len(lst_m), len(lst_v)
            k = 0
            for i, f in enumerate(lst_m):
                f()
                tgt = (i + 1) * nv_ // nm_
                while k < tgt:
                    a(lst_v[k])
                    k += 1
            while k < nv_:
                a(lst_v[k])
                k += 1
            if lst_m is m1 and t + 2 <= 8:
                rdv(t + 2)
    for f in pv(8, 1):
        f()
    stamp(a, 4)
    a("s_mul_i32 s3, s%d, 144" % S_MT)
    a("s_add_u32 s3, s3, s%d" % S_HEAD)
    a("s_lshl_b32 s3, s3, 14")
    a("s_lshl_b32 s4, s%d, 11" % S_WAVE)
    a("s_add_u32 s3, s3, s4")
    a("s_add_u32 s3, s3, 0x%x" % WS_ACT)
    for q in range(2):
        a("v_rcp_f32 v%d, v%d" % (T + q, V_SUM + 4 * q))
        a("v_mul_f32 v%d, v%d, v%d" % (T + q, T + q, V_G + q))
        o = V_O + 8 * q
        for i in range(8):
            a("v_mul_f32 v%d, v%d, v%d" % (o + i, o + i, T + q))
        for i in range(4):
            a("v_cvt_pk_bf16_f32 v%d, v%d, v%d" % (o + i, o + 2 * i, o + 2 * i + 1))
        a("buffer_store_dwordx4 %s, v%d, s[%d:%d], s3 offen offset:%d" % (vr(o, 4), V_L16, SRD, SRD + 3, 1024 * q))
    if gen_k1.STAMPS:
        a("s_waitcnt vmcnt(0)")
        stamp(a, 5)
        stamp(a, 6, True)
        a("s_cmp_ge_u32 s%d, 4" % S_WAVE)
        a("s_cbranch_scc1 L_k2_exit")
        stamp_flush(a, 7, SRD)
    a.label("L_k2_exit")
    a("s_endpgm")
    a.extend(fix)
    a.lines = fix_hazards(a.lines, True)
    return a.text(), kernel_desc(name, NV + NA, NV, 100), 98304


if __name__ == "__main__":
    t, d, lds = gen_k2()
    print(t)
```

```python
from asmlib import *
from gen_k1 import (WS_ACT, WS_G, WS_PART, WS_SIZE, S_WS, S_WO, S_W2, S_OUT, load_kernargs, srd_ws, stamp, stamp_flush)
import gen_k1

SRD_A, SRD_W, SRD_O = 36, 40, 44
S_MT, S_NT, S_WAVE, S_KS = 48, 49, 50, 51
S_TMP, S_T2, S_OFFA, S_OFFW, S_CNT, S_WDW, S_FLAG = 56, 57, 58, 59, 60, 61, 62

NSTEP = 36
V_WF = 128
V_RB = 160
V_DW = 176
V_L16 = 178
V_OMG = 180
V_T = 184
NV = 192


def acc(t, u):
    return (t * 4 + u) * 4


class K3:
    def __init__(self, R=12, L=10, BP=2):
        self.R, self.L, self.BP = R, L, BP
        self.vm = Counter(63)
        self.lg = Counter(15)

    def loads(self, s):
        out = []
        slot = s % self.R
        for i in range(2):
            pre = ["s_add_u32 m0, s%d, 0x%x" % (S_WDW, slot * 8192)] if i == 0 else []
            out.append((pre, "buffer_load_dwordx4 v%d, s[%d:%d], s%d offen%s lds" % (
                V_DW + i, SRD_W, SRD_W + 3, S_OFFW, " offset:1024" if i else ""), ("W", s)))
        for u in range(4):
            out.append(([], "buffer_load_dwordx4 %s, v%d, s[%d:%d], s%d offen offset:%d" % (
                ar(slot * 16 + 4 * u, 4), V_L16, SRD_A, SRD_A + 3, S_OFFA, 1024 * u), ("A", s, u)))
        return out

    def adv(self):
        return ["s_add_u32 s%d, s%d, 0x4000" % (S_OFFA, S_OFFA), "s_add_u32 s%d, s%d, 0x10000" % (S_OFFW, S_OFFW)]

    def emit_load(self, a, d):
        pre, ins, tag = d
        if len(self.vm.ops) >= 63:
            a("s_waitcnt vmcnt(62)")
            self.vm.ops = self.vm.ops[-62:]
        for p in pre:
            a(p)
        if pre:
            a("s_nop 0")
        a(ins)
        self.vm.issue(tag)

    def rdw(self, a, s, t, jj):
        slot = s % self.R
        off = slot * 8192 + jj * 4096
        base = V_RB + t + (8 if off >= 65536 else 0)
        a("ds_read_b64_tr_b16 %s, v%d offset:%d" % (vr(V_WF + 4 * t + 2 * jj, 2), base, off % 65536))
        self.lg.issue(("W", s, t))

    def barrier(self, a, j):
        nv = self.vm.need(lambda tg: tg[0] == "W" and tg[1] <= j + self.BP)
        nl = self.lg.need(lambda tg: True)
        w = waitcnt(nv, nl)
        if w:
            a(w)
        a("s_barrier")

    def step(self, a, j):
        nm = 32
        side = [[] for _ in range(nm + 1)]
        if j % self.BP == 0:
            side[4].append(("bar",))
        for t in range(8):
            for jj in range(2):
                side[(t + 1) * 4 + jj if t < 7 else nm].append(("rw", t, jj))
        ld = self.loads(j + self.L)
        for i, p in enumerate(self.adv()):
            side[1 + i].append(("s", p))
        for i, d in enumerate(ld):
            side[6 + 4 * i].append(("ld", d))
        for i in range(nm + 1):
            for it in side[i]:
                if it[0] == "s":
                    a(it[1])
                elif it[0] == "bar":
                    self.barrier(a, j)
                elif it[0] == "rw":
                    self.rdw(a, j + 1, it[1], it[2])
                elif it[0] == "ld":
                    self.emit_load(a, it[1])
            if i < nm:
                t, u = i // 4, i % 4
                nl = self.lg.need(lambda tg: tg[1] == j and tg[2] == t)
                nv = self.vm.need(lambda tg: tg[0] == "A" and tg[1] == j and tg[2] == u)
                w = waitcnt(nv, nl)
                if w:
                    a(w)
                d = vr(acc(t, u), 4)
                a("v_mfma_f32_16x16x32_bf16 %s, %s, %s, %s" % (d, vr(V_WF + 4 * t, 4), ar((j % self.R) * 16 + 4 * u, 4), d))


def verify():
    for t in range(8):
        for jj in range(2):
            ad = []
            for l in range(64):
                g, r, cc = l >> 4, (l >> 2) & 3, l & 3
                k = 4 * g + r + 16 * jj
                ad.append(k * 256 + ((t ^ (k & 7)) * 32) + cc * 8)
            assert check_b64_conflict(ad) == 1


def gen_k3(name="k3_kernel", R=12, L=10, BP=2):
    verify()
    g = K3(R, L, BP)
    a = Asm()
    T = V_T
    a.raw(kernel_header(name).rstrip("\n"))
    a("s_cmp_ge_u32 s2, 256")
    a("s_cbranch_scc1 L_k3_exit")
    stamp(a, 0, True)
    stamp(a, 1)
    load_kernargs(a)
    a("v_lshrrev_b32 v1, 6, v0")
    a("v_and_b32 v0, 63, v0")
    a("v_readfirstlane_b32 s%d, v1" % S_WAVE)
    a("v_lshlrev_b32 v%d, 4, v0" % V_L16)
    a("s_bfe_u32 s%d, s2, 0x20001" % S_KS)
    a("s_and_b32 s3, s2, 1")
    a("s_lshl_b32 s3, s3, 2")
    a("s_lshr_b32 s4, s2, 6")
    a("s_add_u32 s%d, s3, s4" % S_MT)
    a("s_bfe_u32 s%d, s2, 0x30003" % S_NT)
    a("v_lshrrev_b32 v%d, 4, v0" % T)
    a("v_and_b32 v%d, 15, v0" % (T + 1))
    a("s_lshl_b32 s3, s%d, 14" % S_WAVE)
    a("v_lshlrev_b32 v%d, 1, v%d" % (T + 2, T))
    a("v_xor_b32 v%d, v%d, v%d" % (T + 2, T + 2, T + 1))
    a("v_lshlrev_b32 v%d, 11, v%d" % (T + 3, T))
    a("v_add_u32 v%d, s3, v%d" % (T + 3, T + 3))
    a("v_lshl_add_u32 v%d, v%d, 4, v%d" % (V_DW, T + 2, T + 3))
    a("v_xor_b32 v%d, 0x80, v%d" % (V_DW + 1, V_DW))
    a("v_add_u32 v%d, 0x%x, v%d" % (V_DW + 1, 4 * 2048 - 1024, V_DW + 1))
    a("s_lshl_b32 s%d, s%d, 11" % (S_WDW, S_WAVE))
    a("s_mul_i32 s5, s%d, 36" % S_KS)
    a("s_cmp_eq_u32 s%d, 0" % S_KS)
    a("s_cselect_b32 s%d, 1, 0" % S_FLAG)
    a("s_cselect_b32 s6, 32, s5")
    a("s_lshl_b32 s%d, s6, 14" % S_OFFA)
    a("s_lshl_b32 s4, s%d, 12" % S_WAVE)
    a("s_add_u32 s%d, s%d, s4" % (S_OFFA, S_OFFA))
    a("s_sub_u32 s6, s6, 32")
    a("s_lshl_b32 s%d, s6, 16" % S_OFFW)
    a("s_add_u32 s5, s5, 36")
    a("s_mul_i32 s7, s%d, 0x%x" % (S_MT, 144 * 16384))
    a("s_add_u32 s7, s7, 0x%x" % WS_ACT)
    a("s_lshl_b32 s8, s%d, 8" % S_NT)
    a("s_waitcnt lgkmcnt(0)")
    a("s_add_u32 s%d, s%d, s8" % (SRD_W, S_W2))
    a("s_addc_u32 s%d, s%d, 0" % (SRD_W + 1, S_W2 + 1))
    a("s_and_b32 s%d, s%d, 0xffff" % (SRD_W + 1, SRD_W + 1))
    a("s_sub_u32 s9, s5, 32")
    a("s_lshl_b32 s9, s9, 16")
    a("s_sub_u32 s%d, s9, s8" % (SRD_W + 2))
    a("s_mov_b32 s%d, 0x20000" % (SRD_W + 3))
    a("s_add_u32 s%d, s%d, s7" % (SRD_A, S_WS))
    a("s_addc_u32 s%d, s%d, 0" % (SRD_A + 1, S_WS + 1))
    a("s_and_b32 s%d, s%d, 0xffff" % (SRD_A + 1, SRD_A + 1))
    a("s_lshl_b32 s%d, s5, 14" % (SRD_A + 2))
    a("s_mov_b32 s%d, 0x20000" % (SRD_A + 3))
    for s in range(L):
        if s == 4:
            a("s_cmp_eq_u32 s%d, 0" % S_KS)
            a("s_cbranch_scc0 L_k3_nosw")
            a("s_add_u32 s%d, s%d, s8" % (SRD_W, S_WO))
            a("s_addc_u32 s%d, s%d, 0" % (SRD_W + 1, S_WO + 1))
            a("s_and_b32 s%d, s%d, 0xffff" % (SRD_W + 1, SRD_W + 1))
            a("s_sub_u32 s%d, 0x200000, s8" % (SRD_W + 2))
            a("s_mov_b32 s%d, 0x80000" % (SRD_A + 2))
            a("s_mov_b32 s%d, s4" % S_OFFA)
            a("s_mov_b32 s%d, 0" % S_OFFW)
            a.label("L_k3_nosw")
        for d in g.loads(s):
            g.emit_load(a, d)
        if s < L - 1:
            for p in g.adv():
                a(p)
        if s == 0:
            srd_ws(a, SRD_O)
            a("v_lshlrev_b32 v%d, 2, v%d" % (T + 2, T + 1))
            a("s_lshl_b32 s9, s%d, 10" % S_MT)
            a("s_lshl_b32 s10, s%d, 8" % S_WAVE)
            a("s_add_u32 s9, s9, s10")
            a("s_add_u32 s9, s9, 0x%x" % (WS_G + 8192))
            for u in range(4):
                a("buffer_load_dword v%d, v%d, s[%d:%d], s9 offen offset:%d" % (V_OMG + u, T + 2, SRD_O, SRD_O + 3, 64 * u))
                g.vm.issue(("G", -1, u))
        if s == 1:
            a("v_bfe_u32 v%d, v0, 2, 4" % (T + 2))
            a("v_and_b32 v%d, 7, v%d" % (T + 3, T + 2))
            a("v_lshlrev_b32 v%d, 8, v%d" % (T + 2, T + 2))
            a("v_lshl_add_u32 v%d, v%d, 5, v%d" % (T + 2, T + 3, T + 2))
            a("v_and_b32 v%d, 3, v0" % (T + 3))
            a("v_lshl_add_u32 v%d, v%d, 3, v%d" % (V_RB, T + 3, T + 2))
            for t in range(1, 8):
                a("v_xor_b32 v%d, %d, v%d" % (V_RB + t, t * 32, V_RB))
            for t in range(8):
                a("v_add_u32 v%d, 0x10000, v%d" % (V_RB + 8 + t, V_RB + t))
        if s == 2:
            for i in range(64):
                a("v_mov_b32 v%d, 0" % (i if i else 64))
        if s == 3:
            for i in range(65, 128):
                a("v_mov_b32 v%d, 0" % i)
    a("v_mov_b32 v0, 0")
    g.barrier(a, -BP)
    for t in range(8):
        for jj in range(2):
            g.rdw(a, 0, t, jj)
    stamp(a, 2)
    a("s_mov_b32 s%d, %d" % (S_CNT, NSTEP // R))
    bodies = []
    for it in range(3):
        b = Asm()
        for j in range(R * it, R * it + R):
            if j % R == 4:
                b("s_cmp_eq_u32 s%d, 1" % S_FLAG)
                b("s_cbranch_scc1 L_k3_scale")
                b.label("L_k3_scret")
            g.step(b, j)
        bodies.append(b.text())
    assert bodies[1] == bodies[2], "loop body not periodic"
    a.raw(".p2align 6")
    a.label("L_k3_loop")
    a.raw(bodies[2].rstrip("\n"))
    a("s_sub_u32 s%d, s%d, 1" % (S_CNT, S_CNT))
    a("s_cmp_lg_u32 s%d, 0" % S_CNT)
    a("s_cbranch_scc1 L_k3_loop")
    a("s_nop 7")
    stamp(a, 3)
    a("s_lshl_b32 s3, s%d, 3" % S_KS)
    a("s_add_u32 s3, s3, s%d" % S_MT)
    a("s_lshl_b32 s3, s3, 3")
    a("s_add_u32 s3, s3, s%d" % S_NT)
    a("s_lshl_b32 s3, s3, 2")
    a("s_add_u32 s3, s3, s%d" % S_WAVE)
    a("s_lshl_b32 s3, s3, 15")
    a("s_add_u32 s3, s3, 0x%x" % WS_PART)
    a("s_cmp_eq_u32 s%d, 0" % S_KS)
    a("s_cbranch_scc0 L_k3_e1")
    for u in range(4):
        a("v_mov_b32 v%d, 1.0" % (V_OMG + u))
    a.label("L_k3_e1")
    for t in range(8):
        for u in range(4):
            r = acc(t, u)
            for i in range(4):
                a("v_mul_f32 v%d, v%d, v%d" % (r + i, r + i, V_OMG + u))
            a("buffer_store_dwordx4 %s, v%d, s[%d:%d], s3 offen offset:%d" % (vr(r, 4), V_L16, SRD_O, SRD_O + 3, u * 1024))
        a("s_add_u32 s3, s3, 0x1000")
    stamp(a, 4)
    if gen_k1.STAMPS:
        a("s_waitcnt vmcnt(0)")
        stamp(a, 5)
        stamp(a, 6, True)
        stamp_flush(a, 7, SRD_O)
    a.label("L_k3_exit")
    a("s_endpgm")
    a.label("L_k3_scale")
    a("s_mov_b32 s%d, 0" % S_FLAG)
    a("s_nop 7")
    for t in range(8):
        for u in range(4):
            r = acc(t, u)
            for i in range(4):
                a("v_mul_f32 v%d, v%d, v%d" % (r + i, r + i, V_OMG + u))
    a("s_nop 1")
    a("s_branch L_k3_scret")
    a.lines = fix_hazards("\n".join(a.lines).split("\n"), True)
    return a.text(), kernel_desc(name, 256 + R * 16, 256, 100), max(R * 8192, 90112)


def gen_k4(name="k4_kernel"):
    a = Asm()
    a.raw(kernel_header(name).rstrip("\n"))
    a("s_cmp_ge_u32 s2, 512")
    a("s_cbranch_scc1 L_k4_exit")
    a("s_load_dwordx2 s[30:31], s[0:1], 56")
    a("s_load_dwordx2 s[34:35], s[0:1], 72")
    a("v_lshrrev_b32 v1, 6, v0")
    a("v_and_b32 v0, 63, v0")
    a("v_readfirstlane_b32 s50, v1")
    a("v_lshlrev_b32 v2, 4, v0")
    a("s_lshr_b32 s3, s2, 1")
    a("s_and_b32 s4, s2, 1")
    a("s_lshl_b32 s5, s3, 15")
    a("s_lshl_b32 s6, s4, 14")
    a("s_add_u32 s5, s5, s6")
    a("s_lshl_b32 s6, s50, 10")
    a("s_add_u32 s5, s5, s6")
    a("s_add_u32 s5, s5, 0x%x" % WS_PART)
    a("s_waitcnt lgkmcnt(0)")
    srd_ws(a, 36)
    for tt in range(4):
        for ks in range(4):
            a("s_add_u32 s6, s5, 0x%x" % (ks * (8 << 20) + tt * 4096))
            a("buffer_load_dwordx4 %s, v2, s[36:39], s6 offen" % vr(16 + (tt * 4 + ks) * 4, 4))
    a("s_mov_b32 s40, s30")
    a("s_and_b32 s41, s31, 0xffff")
    a("s_mov_b32 s42, 0x400000")
    a("s_mov_b32 s43, 0x20000")
    a("s_lshr_b32 s7, s3, 5")
    a("s_lshl_b32 s7, s7, 19")
    a("s_and_b32 s8, s3, 3")
    a("s_lshl_b32 s8, s8, 17")
    a("s_add_u32 s7, s7, s8")
    a("s_lshl_b32 s8, s50, 15")
    a("s_add_u32 s7, s7, s8")
    a("s_bfe_u32 s8, s3, 0x30002")
    a("s_lshl_b32 s8, s8, 8")
    a("s_add_u32 s7, s7, s8")
    a("s_lshl_b32 s8, s4, 7")
    a("s_add_u32 s7, s7, s8")
    a("v_and_b32 v3, 15, v0")
    a("v_lshlrev_b32 v3, 11, v3")
    a("v_bfe_u32 v4, v0, 4, 1")
    a("v_lshl_add_u32 v3, v4, 5, v3")
    a("v_bfe_u32 v4, v0, 5, 1")
    a("v_lshl_add_u32 v3, v4, 4, v3")
    for tp in range(2):
        for h in range(2):
            tt = 2 * tp + h
            b = 16 + tt * 16
            a("s_waitcnt vmcnt(%d)" % (12 - 4 * tt + tp))
            for i in range(4):
                a("v_add_f32 v%d, v%d, v%d" % (b + i, b + i, b + 4 + i))
                a("v_add_f32 v%d, v%d, v%d" % (b + 8 + i, b + 8 + i, b + 12 + i))
            for i in range(4):
                a("v_add_f32 v%d, v%d, v%d" % (b + i, b + i, b + 8 + i))
        b0, b1 = 16 + 2 * tp * 16, 16 + (2 * tp + 1) * 16
        o = 8 + 4 * tp
        a("v_cvt_pk_bf16_f32 v%d, v%d, v%d" % (o, b0, b0 + 1))
        a("v_cvt_pk_bf16_f32 v%d, v%d, v%d" % (o + 1, b0 + 2, b0 + 3))
        a("v_cvt_pk_bf16_f32 v%d, v%d, v%d" % (o + 2, b1, b1 + 1))
        a("v_cvt_pk_bf16_f32 v%d, v%d, v%d" % (o + 3, b1 + 2, b1 + 3))
        a("v_permlane16_swap_b32 v%d, v%d" % (o, o + 2))
        a("v_permlane16_swap_b32 v%d, v%d" % (o + 1, o + 3))
        a("s_nop 1")
        a("buffer_store_dwordx4 %s, v3, s[40:43], s7 offen offset:%d" % (vr(o, 4), 64 * tp))
    a.label("L_k4_exit")
    a("s_endpgm")
    a.lines = fix_hazards(a.lines, True)
    return a.text(), kernel_desc(name, 80, 80, 100), 0


if __name__ == "__main__":
    t, d, lds = gen_k3()
    print(t)
    t, d, lds = gen_k4()
    print(t)
```

```python
import sys
from asmlib import *
import gen_k1

HEADER = open("gated_mix__sliding_block__dense_activation_relu__prompt.s.ref").read().split("; Override launch")[0]

def build(kernels, path):
    out = HEADER
    for name, text, desc, grid, block, lds in kernels:
        out += "; @launch kernel=%s grid=(%d,1,1) block=(%d,1,1) lds=%d\n" % (name, grid, block, lds)
    out += '.amdgcn_target "amdgcn-amd-amdhsa--gfx950"\n.text\n'
    seen = set()
    for name, text, desc, grid, block, lds in kernels:
        if name in seen: continue
        seen.add(name)
        out += text + "\n"
    out += '.section .rodata,"a"\n'
    seen = set()
    for name, text, desc, grid, block, lds in kernels:
        if name in seen: continue
        seen.add(name)
        out += desc
    open(path, "w").write(out)


def full(path, **kw):
    import gen_k2, gen_k3
    t1, d1, l1 = gen_k1.gen_k1()
    t2, d2, l2 = gen_k2.gen_k2()
    t3, d3, l3 = gen_k3.gen_k3()
    t4, d4, l4 = gen_k3.gen_k4()
    build([("k1_kernel", t1, d1, 256, 256, l1), ("k2_kernel", t2, d2, 256, 512, l2),
           ("k3_kernel", t3, d3, 256, 256, l3), ("k4_kernel", t4, d4, 512, 256, l4)], path)

if __name__ == "__main__":
    full(sys.argv[1] if len(sys.argv) > 1 else "full.s")
```

```python
import sys
from asmlib import *
import gen_k1

HEADER = open("gated_mix__sliding_block__dense_activation_relu__prompt.s.ref").read().split("; Override launch")[0]

def build(kernels, path):
    out = HEADER
    for name, text, desc, grid, block, lds in kernels:
        out += "; @launch kernel=%s grid=(%d,1,1) block=(%d,1,1) lds=%d\n" % (name, grid, block, lds)
    out += '.amdgcn_target "amdgcn-amd-amdhsa--gfx950"\n.text\n'
    seen = set()
    for name, text, desc, grid, block, lds in kernels:
        if name in seen: continue
        seen.add(name)
        out += text + "\n"
    out += '.section .rodata,"a"\n'
    seen = set()
    for name, text, desc, grid, block, lds in kernels:
        if name in seen: continue
        seen.add(name)
        out += desc
    open(path, "w").write(out)


def full(path, stamp=None, k1={}, k2={}, k3={}, k4={}):
    import gen_k2, gen_k3
    gen_k1.STAMPS = stamp == "k1"
    t1, d1, l1 = gen_k1.gen_k1(**k1)
    gen_k1.STAMPS = stamp == "k2"
    t2, d2, l2 = gen_k2.gen_k2(**k2)
    gen_k1.STAMPS = stamp == "k3"
    t3, d3, l3 = gen_k3.gen_k3(**k3)
    gen_k1.STAMPS = False
    t4, d4, l4 = gen_k3.gen_k4(**k4)
    build([("k1_kernel", t1, d1, 256, 256, l1), ("k2_kernel", t2, d2, 256, 512, l2),
           ("k3_kernel", t3, d3, 256, 256, l3), ("k4_kernel", t4, d4, 512, 256, l4)], path)

def full2(path, stamp=None, k1={}, k23={}):
    import gen_k23
    gen_k1.STAMPS = stamp == "k1"
    t1, d1, l1 = gen_k1.gen_k1(**k1)
    gen_k1.STAMPS = stamp == "k23"
    t2, d2, l2 = gen_k23.gen_k23(**k23)
    gen_k1.STAMPS = False
    build([("k1_kernel", t1, d1, 256, 256, l1), ("k23_kernel", t2, d2, 256, 256, l2)], path)

if __name__ == "__main__":
    full("full.s")
    for k in ("k1", "k2", "k3"):
        full("st_%s.s" % k, stamp=k)
```

```python
from asmlib import *

WS_Q = 0
WS_K = 4 << 20
WS_V = 8 << 20
WS_ACT = 16 << 20
WS_G = 40 << 20
WS_PART = 48 << 20
WS_FL = 41 << 20
WS_SIZE = 268435456

S_X, S_WQKV, S_WO, S_BX, S_W1, S_W2, S_GATE, S_OUT, S_DBG, S_WS = 16, 18, 20, 22, 24, 26, 28, 30, 32, 34
SRD_A, SRD_W, SRD_O = 36, 40, 44
S_MT, S_NT, S_WAVE, S_WR, S_WC = 48, 49, 50, 51, 52
S_SL = 53
S_TMP, S_KA, S_OFFA, S_OFFW, S_CNT, S_ADW, S_WDW, S_T2, S_T3 = 56, 57, 58, 59, 60, 61, 62, 63, 64


STAMPS = False
ABL = set()
WS_STAMP = 200 << 20
S_ST = 68


NST = [0]


ITER_MODE = False
LATE = [False]


def stamp_iter(a, n):
    if not (STAMPS and ITER_MODE):
        return
    b = NST[0]
    NST[0] += n
    assert NST[0] <= 14
    a("s_waitcnt lgkmcnt(0)")
    a("s_memtime s[%d:%d]" % (S_ST + 14, S_ST + 15))
    for i in range(n - 1):
        a("s_mov_b32 s%d, s%d" % (S_ST + b + i, S_ST + b + i + 1))
    a("s_waitcnt lgkmcnt(0)")
    a("s_mov_b32 s%d, s%d" % (S_ST + b + n - 1, S_ST + 14))


def stamp(a, idx=None, real=False):
    if not STAMPS:
        return
    if ITER_MODE and not real and NST[0] >= 13:
        return
    if real:
        slot = 0 if idx == 0 else 1
        if idx == 0:
            NST[0] = 2
    else:
        slot = NST[0]
        NST[0] += 1
        assert slot < 14
    a("s_waitcnt lgkmcnt(0)")
    a("%s s[%d:%d]" % ("s_memrealtime" if real else "s_memtime", S_ST + 14, S_ST + 15))
    a("s_waitcnt lgkmcnt(0)")
    a("s_mov_b32 s%d, s%d" % (S_ST + slot, S_ST + 14))


def stamp_flush(a, n, srd):
    if not STAMPS:
        return
    a("s_lshl_b32 s4, s2, 2")
    a("s_add_u32 s4, s4, s%d" % S_WAVE)
    a("s_lshl_b32 s4, s4, 6")
    a("s_add_u32 s4, s4, 0x%x" % WS_STAMP)
    a("v_mov_b32 v0, 0")
    a("s_mov_b64 exec, 1")
    a("s_mov_b32 s%d, %d" % (S_ST + 14, NST[0]))
    a("s_getreg_b32 s%d, hwreg(HW_REG_XCC_ID)" % (S_ST + 15))
    for i in list(range(NST[0])) + [14, 15]:
        a("v_mov_b32 v1, s%d" % (S_ST + i))
        a("buffer_store_dword v1, v0, s[%d:%d], s4 offen offset:%d" % (srd, srd + 3, 4 * i))
        a("s_nop 1")


def load_kernargs(a):
    a("s_load_dwordx16 s[16:31], s[0:1], 0")
    a("s_load_dwordx4 s[32:35], s[0:1], 64")


class G1Cfg:
    def __init__(self, kind, RA=3, split_a=True, dma_pos=None):
        self.kind = kind
        self.RA = RA
        self.split_a = split_a
        self.MU = 8
        if kind == "ffn":
            self.NT = 224
            self.ldw = 7168
            self.hbits = 1
        else:
            self.NT = 192
            self.ldw = 6144
            self.hbits = 2
        self.NU = self.NT // 32
        self.RB = self.NT * 2
        self.CPR = self.NT // 8
        self.nW = (8 * self.RB + 1023) // 1024
        self.GS = self.nW * 1024
        self.HS = 4 * self.GS
        self.WREG = RA * 32768
        self.LDS = self.WREG + 4 * self.HS
        self.NS = 16

    def h(self, k):
        if self.kind == "ffn":
            return (k >> 3) & 1
        return ((k >> 1) & 1) | (((k >> 3) & 1) << 1)

    def wreg(self, t):
        if UNI and self.kind == "ffn" and t == 6:
            return V_W3
        return V_W + (t & 1)

    def seg(self, wc, t):
        if self.kind == "ffn":
            if UNI:
                return 8 * wc + t if t < 6 else 6 + wc
            return 7 * wc + t
        return 4 * (t >> 1) + 2 * wc + (t & 1)

    def wpos(self, k, s):
        return (k >> 3) * self.GS + (k & 7) * self.RB + (s ^ self.h(k)) * 32

    def tile_imm(self, t):
        if self.kind == "ffn":
            if UNI and t == 6:
                return 0
            return (t >> 1) * 64
        return (t >> 1) * 128

    def verify(self):
        for wc in range(2):
            for t in range(self.NU):
                for j in range(2):
                    addrs = []
                    for l in range(64):
                        g, r, cc = l >> 4, (l >> 2) & 3, l & 3
                        k = 8 * g + r + 4 * j
                        a = self.wpos(k, self.seg(wc, t)) + cc * 8
                        tb = 6 if (UNI and self.kind == "ffn" and t == 6) else t & 1
                        base = self.wpos(8 * g + r, self.seg(wc, tb)) + cc * 8
                        assert a == base + self.tile_imm(t) + j * 4 * self.RB
                        addrs.append(a)
                    assert check_b64_conflict(addrs) == 1
        for ks in range(2):
            addrs = [((l & 15) * 128 + (((4 * ks + (l >> 4)) ^ (((l & 15) >> 1) & 7)) * 16)) for l in range(64)]
            assert check_b128_conflict(addrs) == 1


UNI = False
V_W3 = 249
V_DA = 224
V_DW = 232
V_AL = 236
V_A = 238
V_W = 240
V_LANE = 242
V_T = 243
V_L16 = 252
A_AF = 0
A_WF = 64


def acc(cfg, t, u):
    return (t * cfg.MU + u) * 4


def gen_prologue(a, cfg):
    T = V_T
    a("s_lshl_b32 s%d, s%d, 19" % (S_TMP, S_MT))
    a("s_add_u32 s%d, s%d, s%d" % (SRD_A, S_X, S_TMP))
    a("s_addc_u32 s%d, s%d, 0" % (SRD_A + 1, S_X + 1))
    a("s_and_b32 s%d, s%d, 0xffff" % (SRD_A + 1, SRD_A + 1))
    a("s_mov_b32 s%d, 0x80000" % (SRD_A + 2))
    a("s_mov_b32 s%d, 0x20000" % (SRD_A + 3))
    if cfg.kind == "ffn":
        wp, colb, tot = S_W1, 448, 1024 * 7168
    else:
        wp, colb, tot = S_WQKV, 128, 1024 * 6144
    a("s_mul_i32 s%d, s%d, %d" % (S_TMP, S_NT, colb))
    a("s_add_u32 s%d, s%d, s%d" % (SRD_W, wp, S_TMP))
    a("s_addc_u32 s%d, s%d, 0" % (SRD_W + 1, wp + 1))
    a("s_and_b32 s%d, s%d, 0xffff" % (SRD_W + 1, SRD_W + 1))
    a("s_sub_u32 s%d, %d, s%d" % (SRD_W + 2, tot, S_TMP))
    a("s_mov_b32 s%d, 0x20000" % (SRD_W + 3))
    a("v_lshrrev_b32 v%d, 3, v%d" % (T, V_LANE))
    a("s_lshl_b32 s%d, s%d, 6" % (S_TMP, S_WAVE))
    a("v_add_u32 v%d, s%d, v%d" % (T, S_TMP, T))
    a("v_lshlrev_b32 v%d, 11, v%d" % (T, T))
    a("v_and_b32 v%d, 7, v%d" % (T + 1, V_LANE))
    a("v_lshrrev_b32 v%d, 4, v%d" % (T + 2, V_LANE))
    a("v_xor_b32 v%d, v%d, v%d" % (T + 3, T + 1, T + 2))
    a("v_xor_b32 v%d, 4, v%d" % (T + 4, T + 3))
    a("v_lshl_add_u32 v%d, v%d, 4, v%d" % (T + 3, T + 3, T))
    a("v_lshl_add_u32 v%d, v%d, 4, v%d" % (T + 4, T + 4, T))
    for i in range(8):
        a("v_add_u32 v%d, 0x%x, v%d" % (V_DA + i, i * 16384 - (i % 4) * 1024, T + 3 + (i & 1)))
    magic = {28: 2341, 24: 2731, 32: 2048}[cfg.CPR]
    for q in range(64 * cfg.nW):
        assert (q * magic) >> 16 == q // cfg.CPR
    a("s_lshl_b32 s%d, s%d, 3" % (S_T2, S_WAVE))
    a("s_mov_b32 s%d, %d" % (S_T3, cfg.ldw))
    for i in range(cfg.nW):
        q, kk, c, k, hh, d = T, T + 1, T + 2, T + 3, T + 4, V_DW + i
        a("v_add_u32 v%d, %d, v%d" % (q, 64 * i, V_LANE))
        a("v_mul_u32_u24 v%d, %d, v%d" % (kk, magic, q))
        a("v_lshrrev_b32 v%d, 16, v%d" % (kk, kk))
        a("v_mul_u32_u24 v%d, %d, v%d" % (c, cfg.CPR, kk))
        a("v_sub_u32 v%d, v%d, v%d" % (c, q, c))
        a("v_add_u32 v%d, s%d, v%d" % (k, S_T2, kk))
        if cfg.kind == "ffn":
            a("v_bfe_u32 v%d, v%d, 3, 1" % (hh, k))
            a("v_lshlrev_b32 v%d, 1, v%d" % (hh, hh))
        else:
            a("v_and_b32 v%d, 2, v%d" % (hh, k))
            a("v_bfe_u32 v%d, v%d, 3, 1" % (T + 5, k))
            a("v_lshl_add_u32 v%d, v%d, 2, v%d" % (hh, T + 5, hh))
        a("v_xor_b32 v%d, v%d, v%d" % (c, c, hh))
        if cfg.kind == "ffn":
            a("v_lshlrev_b32 v%d, 4, v%d" % (c, c))
        else:
            a("v_lshrrev_b32 v%d, 3, v%d" % (T + 5, c))
            a("v_lshlrev_b32 v%d, 11, v%d" % (T + 5, T + 5))
            a("v_and_b32 v%d, 7, v%d" % (c, c))
            a("v_lshl_add_u32 v%d, v%d, 4, v%d" % (c, c, T + 5))
        a("v_mul_lo_u32 v%d, v%d, s%d" % (d, k, S_T3))
        a("v_add_u32 v%d, v%d, v%d" % (d, d, c))
        if i:
            a("v_subrev_u32 v%d, %d, v%d" % (d, 1024 * i, d))
        if 64 * (i + 1) > 8 * cfg.CPR:
            a("v_mov_b32 v%d, 0x70000000" % (T + 5))
            a("v_cmp_gt_u32 vcc, 8, v%d" % kk)
            a("s_nop 1")
            a("v_cndmask_b32 v%d, v%d, v%d, vcc" % (d, T + 5, d))
    m, g, f = T, T + 1, T + 2
    a("v_and_b32 v%d, 15, v%d" % (m, V_LANE))
    a("v_lshrrev_b32 v%d, 4, v%d" % (g, V_LANE))
    a("v_lshrrev_b32 v%d, 1, v%d" % (f, m))
    a("v_xor_b32 v%d, v%d, v%d" % (f, f, g))
    a("s_lshl_b32 s%d, s%d, 14" % (S_TMP, S_WR))
    a("v_lshlrev_b32 v%d, 7, v%d" % (T + 3, m))
    a("v_add_u32 v%d, s%d, v%d" % (T + 3, S_TMP, T + 3))
    a("v_lshl_add_u32 v%d, v%d, 4, v%d" % (V_AL, f, T + 3))
    a("v_xor_b32 v%d, 64, v%d" % (V_AL + 1, V_AL))
    r, cc, hh, b = T + 2, T + 3, T + 4, T + 5
    a("v_bfe_u32 v%d, v%d, 2, 2" % (r, V_LANE))
    a("v_and_b32 v%d, 3, v%d" % (cc, V_LANE))
    if cfg.kind == "ffn":
        a("v_and_b32 v%d, 1, v%d" % (hh, g))
        a("s_mul_i32 s%d, s%d, 7" % (S_TMP, S_WC))
    else:
        a("v_and_b32 v%d, 1, v%d" % (hh, g))
        a("v_lshlrev_b32 v%d, 1, v%d" % (hh, hh))
        a("v_lshrrev_b32 v%d, 1, v%d" % (b, r))
        a("v_or_b32 v%d, v%d, v%d" % (hh, hh, b))
        a("s_lshl_b32 s%d, s%d, 1" % (S_TMP, S_WC))
    a("v_mul_u32_u24 v%d, %d, v%d" % (b, cfg.GS, g))
    a("v_mul_u32_u24 v%d, %d, v%d" % (T + 6, cfg.RB, r))
    a("v_add_u32 v%d, v%d, v%d" % (b, b, T + 6))
    a("v_lshl_add_u32 v%d, v%d, 3, v%d" % (b, cc, b))
    a("v_add_u32 v%d, 0x%x, v%d" % (b, cfg.WREG, b))
    for p in range(2):
        a("s_add_u32 s%d, s%d, %d" % (S_T2, S_TMP, p))
        a("v_xor_b32 v%d, s%d, v%d" % (T + 6, S_T2, hh))
        a("v_lshl_add_u32 v%d, v%d, 5, v%d" % (V_W + p, T + 6, b))
    a("s_lshl_b32 s%d, s%d, 13" % (S_ADW, S_WAVE))
    a("s_mul_i32 s%d, s%d, %d" % (S_WDW, S_WAVE, cfg.GS))
    a("s_add_u32 s%d, s%d, 0x%x" % (S_WDW, S_WDW, cfg.WREG))


SRD_P, S_POFF, S_PINC, S_PCNT = 84, 88, 89, 90
V_PF, V_PD = 253, 254
PFD = 3


def pf_setup(a):
    T = V_T
    a("s_and_b32 s3, s2, 7")
    a("s_lshr_b32 s4, s2, 3")
    a("s_mov_b32 s%d, 0x20000" % (SRD_P + 3))
    a("s_mov_b32 s%d, 0" % S_POFF)
    a("s_cmp_ge_u32 s%d, 2" % S_WAVE)
    a("s_cbranch_scc1 L_pf_w")
    a("s_mov_b32 s%d, s%d" % (SRD_P, S_X))
    a("s_and_b32 s%d, s%d, 0xffff" % (SRD_P + 1, S_X + 1))
    a("s_mov_b32 s%d, 0x400000" % (SRD_P + 2))
    a("s_lshl_b32 s5, s4, 17")
    a("s_lshl_b32 s6, s%d, 7" % S_WAVE)
    a("s_add_u32 s5, s5, s6")
    a("v_lshlrev_b32 v%d, 11, v%d" % (V_PF, V_LANE))
    a("v_add_u32 v%d, s5, v%d" % (V_PF, V_PF))
    a("s_movk_i32 s%d, 256" % S_PINC)
    a("s_branch L_pf_go")
    a.label("L_pf_w")
    a("v_lshrrev_b32 v%d, 5, v%d" % (T, V_LANE))
    a("v_bfe_u32 v%d, v%d, 4, 1" % (T + 1, V_LANE))
    a("v_lshl_add_u32 v%d, v%d, 6, v%d" % (T, T, T + 1))
    a("s_lshl_b32 s5, s4, 1")
    a("v_add_u32 v%d, s5, v%d" % (T, T))
    a("v_and_b32 v%d, 15, v%d" % (T + 1, V_LANE))
    a("v_mov_b32 v%d, 0x70000000" % (T + 3))
    a("s_cmp_eq_u32 s%d, 3" % S_WAVE)
    a("s_cbranch_scc1 L_pf_w1")
    a("s_mov_b32 s%d, s%d" % (SRD_P, S_WQKV))
    a("s_and_b32 s%d, s%d, 0xffff" % (SRD_P + 1, S_WQKV + 1))
    a("s_mov_b32 s%d, 0x600000" % (SRD_P + 2))
    a("v_mul_u32_u24 v%d, 6144, v%d" % (T, T))
    a("v_lshrrev_b32 v%d, 1, v%d" % (T + 2, T + 1))
    a("v_lshl_add_u32 v%d, v%d, 11, v%d" % (T, T + 2, T))
    a("v_and_b32 v%d, 1, v%d" % (T + 2, T + 1))
    a("v_lshl_add_u32 v%d, v%d, 7, v%d" % (T, T + 2, T))
    a("s_lshl_b32 s5, s3, 8")
    a("v_cmp_gt_u32 vcc, 6, v%d" % (T + 1))
    a("s_mov_b32 s%d, %d" % (S_PINC, 128 * 6144))
    a("s_branch L_pf_w2")
    a.label("L_pf_w1")
    a("s_mov_b32 s%d, s%d" % (SRD_P, S_W1))
    a("s_and_b32 s%d, s%d, 0xffff" % (SRD_P + 1, S_W1 + 1))
    a("s_mov_b32 s%d, 0x700000" % (SRD_P + 2))
    a("v_mul_u32_u24 v%d, 7168, v%d" % (T, T))
    a("v_lshl_add_u32 v%d, v%d, 7, v%d" % (T, T + 1, T))
    a("s_mul_i32 s5, s3, 896")
    a("v_cmp_gt_u32 vcc, 7, v%d" % (T + 1))
    a("s_mov_b32 s%d, %d" % (S_PINC, 128 * 7168))
    a.label("L_pf_w2")
    a("v_add_u32 v%d, s5, v%d" % (T, T))
    a("s_nop 0")
    a("v_cndmask_b32 v%d, v%d, v%d, vcc" % (V_PF, T + 3, T))
    a.label("L_pf_go")
    for i in range(PFD):
        a("buffer_load_dword v%d, v%d, s[%d:%d], s%d offen" % (V_PD, V_PF, SRD_P, SRD_P + 3, S_POFF))
        a("s_add_u32 s%d, s%d, s%d" % (S_POFF, S_POFF, S_PINC))


PF2 = False


def pf2_setup(a):
    a("s_bfe_u32 s3, s2, 0x20001")
    a("s_bfe_u32 s4, s2, 0x40003")
    a("s_mul_i32 s5, s3, 224")
    a("s_mul_i32 s6, s4, 14")
    a("s_add_u32 s5, s5, s6")
    a("s_mul_i32 s6, s%d, 5" % S_WAVE)
    a("s_add_u32 s5, s5, s6")
    a("s_lshl_b32 s3, s3, 6")
    a("s_lshl_b32 s4, s4, 2")
    a("s_add_u32 s3, s3, s4")
    a("s_cmp_eq_u32 s%d, 3" % S_WAVE)
    a("s_cselect_b32 s5, s3, s5")
    a("s_cselect_b32 s%d, s%d, s%d" % (SRD_P, S_WO, S_W2))
    a("s_cselect_b32 s%d, s%d, s%d" % (SRD_P + 1, S_WO + 1, S_W2 + 1))
    a("s_lshl_b32 s5, s5, 13")
    a("s_add_u32 s%d, s%d, s5" % (SRD_P, SRD_P))
    a("s_addc_u32 s%d, s%d, 0" % (SRD_P + 1, SRD_P + 1))
    a("s_and_b32 s%d, s%d, 0xffff" % (SRD_P + 1, SRD_P + 1))
    a("s_cmp_ge_u32 s%d, 2" % S_WAVE)
    a("s_cselect_b32 s%d, 0x8000, 0xa000" % (SRD_P + 2)) if False else None
    a("s_movk_i32 s3, 0x5000")
    a("s_cselect_b32 s3, 0x4000, s3")
    a("s_lshl_b32 s%d, s3, 1" % (SRD_P + 2))
    a("s_mov_b32 s%d, 0x20000" % (SRD_P + 3))
    a("s_mov_b32 s%d, 0x%x" % (S_POFF, (-2 * 8192) & 0xffffffff))
    a("v_lshlrev_b32 v%d, 7, v%d" % (V_PF, V_LANE))


def pf2_final(a):
    a("s_mov_b32 s%d, 0" % S_POFF)
    for i in range(5):
        a("buffer_load_dword v%d, v%d, s[%d:%d], s%d offen" % (V_PD, V_PF, SRD_P, SRD_P + 3, S_POFF))
        a("s_add_u32 s%d, s%d, 0x2000" % (S_POFF, S_POFF))


class G1Gen:
    def __init__(self, cfg):
        self.cfg = cfg
        self.vm = Counter(63)
        self.lg = Counter(15)
        self.extra = []
        self.extra4 = {}

    def dma_w(self, j):
        cfg = self.cfg
        out = []
        pre = ["s_add_u32 m0, s%d, 0x%x" % (S_WDW, (j % 4) * cfg.HS)]
        for i in range(cfg.nW):
            ins = "buffer_load_dwordx4 v%d, s[%d:%d], s%d offen%s lds" % (
                V_DW + i, SRD_W, SRD_W + 3, S_OFFW, (" offset:%d" % (1024 * i)) if i else "")
            out.append((pre if i == 0 else [], ins, ("W", j + 4)))
        return out

    def dma_a(self, stage, half, slot_sreg):
        out = []
        pre = ["s_add_u32 m0, s%d, s%d" % (S_ADW, slot_sreg)]
        if half:
            pre.append("s_add_u32 m0, m0, 0x1000")
        for i in range(4):
            ins = "buffer_load_dwordx4 v%d, s[%d:%d], s%d offen%s lds" % (
                V_DA + 4 * half + i, SRD_A, SRD_A + 3, S_OFFA, (" offset:%d" % (1024 * i)) if i else "")
            out.append((pre if i == 0 else [], ins, ("A", stage)))
        return out

    def step(self, a, j, mfma=True, reads=True):
        cfg = self.cfg
        RA = cfg.RA
        s, ks = j // 2, j % 2
        MU, NU = cfg.MU, cfg.NU
        nm = MU * NU
        side = [[] for _ in range(nm + 1)]

        def put(i, item):
            side[min(i, nm)].append(item)

        pre = []
        if ks == 0:
            pre.append("s_mov_b32 s%d, s%d" % (S_TMP, S_SL))
            for q in range(RA - 1):
                pre.append("s_mov_b32 s%d, s%d" % (S_SL + q, S_SL + q + 1))
            pre.append("s_mov_b32 s%d, s%d" % (S_SL + RA - 1, S_TMP))
        for i, p in enumerate(pre):
            put(1 + i, ("s", p))
        nks = (j + 1) % 2
        rd_slot = S_SL + (0 if ks == 0 else 1)
        if reads:
            put(len(pre) + 1, ("s", "v_add_u32 v%d, s%d, v%d" % (V_A + nks, rd_slot, V_AL + nks)))
        put(len(pre) + 2, ("s", "s_add_u32 s%d, s%d, 0x%x" % (S_OFFW, S_OFFW, 32 * cfg.ldw)))
        if ks == 1:
            put(3, ("s", "s_add_u32 s%d, s%d, 128" % (S_KA, S_KA)))
            put(4, ("s", "s_cmp_lt_u32 s%d, 2048" % S_KA))
            put(4, ("s", "s_cselect_b32 s%d, s%d, 0x80000000" % (S_OFFA, S_KA)))
        put(MU, ("bar", j))
        for t in range(NU):
            for jj in range(2):
                put((t + 1) * MU + jj, ("rw", t, jj))
        for u in range(MU):
            put(MU + 3 + 2 * u, ("ra", u))
        dm = []
        if j + 4 >= 0:
            dm += self.dma_w(j)
        if cfg.split_a:
            if ks == 1 and s + RA >= 0:
                dm += self.dma_a(s + RA, 0, S_SL)
            if ks == 0 and s - 1 + RA >= 0:
                dm += self.dma_a(s - 1 + RA, 1, S_SL + RA - 1)
        else:
            if ks == 1 and s + RA >= 0:
                dm += self.dma_a(s + RA, 0, S_SL) + self.dma_a(s + RA, 1, S_SL)
        if PFD and j >= 0 and j % 4 == 0:
            put(5, ("s", "s_cmp_gt_u32 s%d, %d" % (S_CNT, PFD)))
            put(5, ("s", "s_cselect_b32 s%d, s%d, 0x80000000" % (S_POFF, S_POFF)))
            put(6, ("dma", ([], "buffer_load_dword v%d, v%d, s[%d:%d], s%d offen" % (V_PD, V_PF, SRD_P, SRD_P + 3, S_POFF), ("P", 0))))
            put(7, ("s", "s_add_u32 s%d, s%d, s%d" % (S_POFF, S_POFF, S_PINC)))
        if PF2 in (True, "mid") and cfg.kind == "qkv" and j >= 0 and j % 4 == 0:
            put(6, ("dma", ([], "buffer_load_dword v%d, v%d, s[%d:%d], s%d offen" % (V_PD, V_PF, SRD_P, SRD_P + 3, S_POFF), ("P", 0))))
            put(7, ("s", "s_add_u32 s%d, s%d, 0x2000" % (S_POFF, S_POFF)))
        if j >= 0 and j % 4 == 0:
            for pos, item in self.extra:
                put(pos, item)
        if j >= 0:
            for pos, item in self.extra4.get(j % 4, []):
                put(pos, item)
        n = len(dm)
        first = MU + 2
        span = nm - first - 2
        for i, d in enumerate(dm):
            put(first + (i * span) // max(n, 1), ("dma", d))

        fs = j % 2
        for i in range(nm + 1):
            for item in side[i]:
                kind = item[0]
                if kind == "s":
                    a(item[1])
                elif kind == "bar":
                    if not reads:
                        continue
                    jn = j + 1
                    nv = self.vm.need(lambda tg: (tg[0] == "W" and tg[1] <= jn) or (tg[0] == "A" and tg[1] <= jn // 2))
                    nl = self.lg.need(lambda tg: True)
                    w = waitcnt(nv, nl)
                    if w:
                        a(w)
                    if not ("nobar" in ABL and j >= 0):
                        a("s_barrier")
                elif kind == "rw":
                    if not reads or ("noread" in ABL and j >= 0):
                        continue
                    t, jj = item[1], item[2]
                    off = ((j + 1) % 4) * cfg.HS + cfg.tile_imm(t) + jj * 4 * cfg.RB
                    a("ds_read_b64_tr_b16 %s, v%d offset:%d" % (ar(A_WF + 4 * t + 2 * jj, 2), cfg.wreg(t), off))
                    self.lg.issue(("W", j + 1, t))
                elif kind == "ra":
                    if not reads or ("noread" in ABL and j >= 0):
                        continue
                    u = item[1]
                    a("ds_read_b128 %s, v%d offset:%d" % (ar(A_AF + 32 * (1 - fs) + 4 * u, 4), V_A + nks, 2048 * u))
                    self.lg.issue(("A", j + 1, u))
                elif kind == "ds":
                    a(item[1])
                    self.lg.issue(("G", -99, -1))
                elif kind == "dma":
                    pre_i, ins, tag = item[1]
                    if "nodma" in ABL and j >= 0:
                        continue
                    for p in pre_i:
                        a(p)
                    if pre_i:
                        a("s_nop 0")
                    a(ins)
                    self.vm.issue(tag)
            if i < nm and mfma and "nomfma" not in ABL:
                t, u = i // MU, i % MU
                nl = self.lg.need(lambda tg: tg[1] == j and ((tg[0] == "W" and tg[2] == t) or (tg[0] == "A" and tg[2] == u)))
                if nl is not None:
                    a(waitcnt(None, nl))
                d = vr(acc(cfg, t, u), 4)
                wf = ar(A_WF + 4 * t, 4)
                af = ar(A_AF + 32 * fs + 4 * u, 4)
                if cfg.kind == "qkv" and t >= 4:
                    a("v_mfma_f32_16x16x32_bf16 %s, %s, %s, %s" % (d, af, wf, d))
                else:
                    a("v_mfma_f32_16x16x32_bf16 %s, %s, %s, %s" % (d, wf, af, d))


def retag(cnt, dj):
    pass


def gen_main(a, cfg, name):
    g = G1Gen(cfg)
    RA = cfg.RA
    first = -2 * RA + 1 if cfg.split_a else -2 * RA + 1
    first = min(first, -4)
    s0 = first // 2
    if first % 2 == 0:
        base = s0 - 1
    else:
        base = s0
    for q in range(RA):
        a("s_mov_b32 s%d, 0x%x" % (S_SL + q, ((base + q) % RA) * 32768))
    a("s_mov_b32 s%d, 0x%x" % (S_OFFW, ((first - 1 + 4) * 32 * cfg.ldw) & 0xffffffff))
    fs1 = first if first % 2 == 1 else first + 1
    a("s_mov_b32 s%d, 0x%x" % (S_KA, ((fs1 // 2 + RA - 1) * 128) & 0xffffffff))
    a("s_mov_b32 s%d, 0" % S_OFFA)
    for j in range(first, -1):
        g.step(a, j, mfma=False, reads=False)
    if PF2 and cfg.kind == "qkv":
        pf2_setup(a)
    for i in range(cfg.MU * cfg.NU * 4):
        a("v_mov_b32 v%d, 0" % i)
    g.step(a, -1, mfma=False, reads=True)
    stamp(a, 2)
    a("s_mov_b32 s%d, %d" % (S_CNT, cfg.NS // 2))
    bodies = []
    for it in range(3):
        b = Asm()
        for j in range(4 * it, 4 * it + 4):
            g.step(b, j)
        bodies.append(b.text())
    if ABL:
        bodies[0] = bodies[2]
    elif PFD or PF2:
        assert bodies[1] == bodies[2], "loop body not periodic"
    else:
        assert bodies[0] == bodies[1] == bodies[2], "loop body not periodic"
    a.raw(".p2align 6")
    a.label("L_%s_loop" % name)
    a.raw(bodies[0].rstrip("\n"))
    a("s_sub_u32 s%d, s%d, 1" % (S_CNT, S_CNT))
    a("s_cmp_lg_u32 s%d, 0" % S_CNT)
    a("s_cbranch_scc1 L_%s_loop" % name)
    a("s_nop 15")
    stamp(a, 3)


SRD_C = 92
MAP2 = True
CODE_PF = True


def code_pf(a, tag, start, end, vtid, va, vd, nbytes, own):
    if not CODE_PF:
        return 0
    a("s_getpc_b64 s[%d:%d]" % (SRD_C, SRD_C + 1))
    a.label("L_pc_" + tag)
    if own:
        a("s_and_b32 s%d, s%d, 0xffffff00" % (SRD_C, SRD_C))
    else:
        a("s_add_u32 s%d, s%d, %s-L_pc_%s" % (SRD_C, SRD_C, start, tag))
        a("s_addc_u32 s%d, s%d, 0" % (SRD_C + 1, SRD_C + 1))
    a("s_and_b32 s%d, s%d, 0xffff" % (SRD_C + 1, SRD_C + 1))
    a("s_mov_b32 s%d, %s-%s" % (SRD_C + 2, end, start))
    a("s_mov_b32 s%d, 0x20000" % (SRD_C + 3))
    a("v_lshlrev_b32 v%d, 6, v%d" % (va, vtid))
    n = (nbytes + 16383) // 16384
    for i in range(n):
        if i:
            a("v_add_u32 v%d, 0x4000, v%d" % (va, va))
        a("buffer_load_dword v%d, v%d, s[%d:%d], 0 offen" % (vd, va, SRD_C, SRD_C + 3))
    return n


def zero_flags(a):
    a("s_cmp_eq_u32 s%d, 0" % S_WAVE)
    a("s_cselect_b32 exec_lo, 0xf, 0")
    a("s_mov_b32 exec_hi, 0")
    a("s_lshl_b32 s%d, s2, 6" % S_T2)
    a("s_add_u32 s%d, s%d, 0x%x" % (S_T2, S_T2, WS_FL))
    for i in range(4):
        a("v_mov_b32 v%d, 0" % (V_T + 1 + i))
    a("buffer_store_dwordx4 %s, v%d, s[%d:%d], s%d offen" % (vr(V_T + 1, 4), V_L16, SRD_O, SRD_O + 3, S_T2))
    a("s_mov_b64 exec, -1")


def srd_ws(a, srd):
    a("s_mov_b32 s%d, s%d" % (srd, S_WS))
    a("s_and_b32 s%d, s%d, 0xffff" % (srd + 1, S_WS + 1))
    a("s_mov_b32 s%d, 0x%x" % (srd + 2, WS_SIZE))
    a("s_mov_b32 s%d, 0x20000" % (srd + 3))


def pack_pair(a, r0, r1, relu):
    a("v_cvt_pk_bf16_f32 v%d, v%d, v%d" % (r0, r0, r0 + 1))
    a("v_cvt_pk_bf16_f32 v%d, v%d, v%d" % (r0 + 1, r0 + 2, r0 + 3))
    a("v_cvt_pk_bf16_f32 v%d, v%d, v%d" % (r0 + 2, r1, r1 + 1))
    a("v_cvt_pk_bf16_f32 v%d, v%d, v%d" % (r0 + 3, r1 + 2, r1 + 3))
    if relu:
        for i in range(4):
            a("v_pk_max_i16 v%d, v%d, 0" % (r0 + i, r0 + i))


import struct, math
QSCALE = struct.unpack("<I", struct.pack("<f", 32 ** -0.5 * math.log2(math.e)))[0]
V_GX = 192
V_GW = 224


def gate_loads(a):
    a("s_lshl_b32 s%d, s%d, 15" % (S_T2, S_NT))
    a("s_lshl_b32 s%d, s%d, 13" % (S_T3, S_WAVE))
    a("s_add_u32 s%d, s%d, s%d" % (S_T2, S_T2, S_T3))
    a("s_mov_b32 s%d, s%d" % (SRD_W, S_GATE))
    a("s_and_b32 s%d, s%d, 0xffff" % (SRD_W + 1, S_GATE + 1))
    a("s_mov_b32 s%d, 2048" % (SRD_W + 2))
    for h in range(2):
        a("buffer_load_dwordx4 %s, v%d, s[%d:%d], 0 offen offset:%d" % (vr(V_GW + 4 * h, 4), V_L16, SRD_W, SRD_W + 3, 1024 * h))
    for i in range(4):
        if i == 2:
            a("s_add_u32 s%d, s%d, 0x1000" % (S_T2, S_T2))
        for h in range(2):
            a("buffer_load_dwordx4 %s, v%d, s[%d:%d], s%d offen offset:%d" % (
                vr(V_GX + 8 * i + 4 * h, 4), V_L16, SRD_A, SRD_A + 3, S_T2, (i % 2) * 2048 + 1024 * h))


def gate_compute(a):
    b = Asm()
    b("s_waitcnt vmcnt(0)")
    G = 0
    for j in range(8):
        b("v_lshlrev_b32 v%d, 16, v%d" % (G + 2 * j, V_GW + j))
        b("v_and_b32 v%d, 0xffff0000, v%d" % (G + 2 * j + 1, V_GW + j))
    R = 16
    t = 20
    b("v_mov_b32 v%d, 0x3f803f80" % 30)
    for i in range(4):
        b("v_mov_b32 v%d, 0" % (R + i))
    for j in range(8):
        for i in range(4):
            x = V_GX + 8 * i + j
            p = t + 2 * i
            b("v_lshlrev_b32 v%d, 16, v%d" % (p, x))
            b("v_and_b32 v%d, 0xffff0000, v%d" % (p + 1, x))
            b("v_mul_f32 v%d, v%d, v%d" % (p, p, G + 2 * j))
            b("v_mul_f32 v%d, v%d, v%d" % (p + 1, p + 1, G + 2 * j + 1))
            b("v_cvt_pk_bf16_f32 v%d, v%d, v%d" % (p, p, p + 1))
            b("v_lshlrev_b32 v%d, 16, v%d" % (p + 1, p))
            b("v_and_b32 v%d, 0xffff0000, v%d" % (p, p))
            b("v_add_f32 v%d, v%d, v%d" % (R + i, R + i, p + 1))
            b("v_add_f32 v%d, v%d, v%d" % (R + i, R + i, p))
    b("v_permlane32_swap_b32 v%d, v%d" % (R, R + 1))
    b("v_permlane32_swap_b32 v%d, v%d" % (R + 2, R + 3))
    b("v_add_f32 v%d, v%d, v%d" % (R, R, R + 1))
    b("v_add_f32 v%d, v%d, v%d" % (R + 2, R + 2, R + 3))
    b("v_permlane16_swap_b32 v%d, v%d" % (R, R + 2))
    b("v_add_f32 v%d, v%d, v%d" % (R, R, R + 2))
    for sh in (8, 4, 2, 1):
        b("v_add_f32_dpp v%d, v%d, v%d row_ror:%d row_mask:0xf bank_mask:0xf" % (R, R, R, sh))
    b("v_cvt_pk_bf16_f32 v%d, v%d, v%d" % (R, R, R))
    b("v_and_b32 v%d, 0xffff0000, v%d" % (R, R))
    b("v_mul_f32 v%d, 0xbfb8aa3b, v%d" % (R, R))
    b("v_exp_f32 v%d, v%d" % (R, R))
    b("v_add_f32 v%d, 1.0, v%d" % (R, R))
    b("v_rcp_f32 v%d, v%d" % (R, R))
    b("v_cvt_pk_bf16_f32 v%d, v%d, v%d" % (R, R, R))
    b("v_and_b32 v%d, 0xffff0000, v%d" % (R, R))
    b("v_sub_f32 v%d, 1.0, v%d" % (R + 1, R))
    b("v_cvt_pk_bf16_f32 v%d, v%d, v%d" % (R + 1, R + 1, R + 1))
    b("v_and_b32 v%d, 0xffff0000, v%d" % (R + 1, R + 1))
    b("v_bfe_u32 v%d, v%d, 4, 1" % (t, V_LANE))
    b("v_bfe_u32 v%d, v%d, 5, 1" % (t + 1, V_LANE))
    b("v_lshlrev_b32 v%d, 3, v%d" % (t, t))
    b("v_lshl_add_u32 v%d, v%d, 2, v%d" % (t, t + 1, t))
    b("s_lshl_b32 s%d, s%d, 10" % (S_T2, S_MT))
    b("s_lshl_b32 s%d, s%d, 6" % (S_T3, S_NT))
    b("s_add_u32 s%d, s%d, s%d" % (S_T2, S_T2, S_T3))
    b("s_lshl_b32 s%d, s%d, 4" % (S_T3, S_WAVE))
    b("s_add_u32 s%d, s%d, s%d" % (S_T2, S_T2, S_T3))
    b("s_add_u32 s%d, s%d, 0x%x" % (S_T2, S_T2, WS_G))
    b("s_add_u32 s%d, s%d, 0x2000" % (S_T3, S_T2))
    b("s_mov_b32 exec_lo, 0x00010001")
    b("s_mov_b32 exec_hi, 0x00010001")
    b("buffer_store_dword v%d, v%d, s[%d:%d], s%d offen" % (R, t, SRD_O, SRD_O + 3, S_T2))
    b("buffer_store_dword v%d, v%d, s[%d:%d], s%d offen" % (R + 1, t, SRD_O, SRD_O + 3, S_T3))
    b("s_mov_b64 exec, -1")
    b.lines = fix_hazards(b.lines)
    a.extend(b)


def gen_epilogue_qkv(a, cfg):
    srd_ws(a, SRD_O)
    a("v_lshlrev_b32 v%d, 4, v%d" % (V_L16, V_LANE))
    zero_flags(a)
    a("s_lshl_b32 s%d, s%d, 1" % (S_TMP, S_NT))
    a("s_add_u32 s%d, s%d, s%d" % (S_TMP, S_TMP, S_WC))
    a("s_lshl_b32 s%d, s%d, 17" % (S_TMP, S_TMP))
    a("s_lshl_b32 s%d, s%d, 14" % (S_T2, S_MT))
    a("s_add_u32 s%d, s%d, s%d" % (S_TMP, S_TMP, S_T2))
    a("s_lshl_b32 s%d, s%d, 13" % (S_T2, S_WR))
    a("s_add_u32 s%d, s%d, s%d" % (S_TMP, S_TMP, S_T2))
    gate_loads(a)
    a("s_mov_b32 s%d, 0x%x" % (S_T3, QSCALE))
    for which, base in ((0, WS_Q), (1, WS_K)):
        for u in range(8):
            r0, r1 = acc(cfg, 2 * which, u), acc(cfg, 2 * which + 1, u)
            if which == 0:
                for r in (r0, r1):
                    for i in range(4):
                        a("v_mul_f32 v%d, s%d, v%d" % (r + i, S_T3, r + i))
            pack_pair(a, r0, r1, False)
            if u % 4 == 0:
                a("s_add_u32 s%d, s%d, 0x%x" % (S_T2, S_TMP, base + u * 1024))
            a("buffer_store_dwordx4 %s, v%d, s[%d:%d], s%d offen offset:%d" % (
                vr(r0, 4), V_L16, SRD_O, SRD_O + 3, S_T2, (u % 4) * 1024))
    for p in range(4):
        for dt in range(2):
            r0, r1 = acc(cfg, 4 + dt, 2 * p), acc(cfg, 4 + dt, 2 * p + 1)
            pack_pair(a, r0, r1, False)
            off = p * 2048 + dt * 1024
            if off % 4096 == 0:
                a("s_add_u32 s%d, s%d, 0x%x" % (S_T2, S_TMP, WS_V + off))
            a("buffer_store_dwordx4 %s, v%d, s[%d:%d], s%d offen offset:%d" % (
                vr(r0, 4), V_L16, SRD_O, SRD_O + 3, S_T2, off % 4096))
    gate_compute(a)


def gen_epilogue_ffn(a, cfg):
    srd_ws(a, SRD_O)
    a("v_lshlrev_b32 v%d, 4, v%d" % (V_L16, V_LANE))
    zero_flags(a)
    a("s_mul_i32 s%d, s%d, 144" % (S_TMP, S_MT))
    a("s_mul_i32 s%d, s%d, 7" % (S_T2, S_NT))
    a("s_add_u32 s%d, s%d, s%d" % (S_TMP, S_TMP, S_T2))
    a("s_add_u32 s%d, s%d, 32" % (S_TMP, S_TMP))
    a("s_lshl_b32 s%d, s%d, 14" % (S_TMP, S_TMP))
    a("s_lshl_b32 s%d, s%d, 13" % (S_T2, S_WR))
    a("s_add_u32 s%d, s%d, s%d" % (S_TMP, S_TMP, S_T2))
    a("s_add_u32 s%d, s%d, 0x%x" % (S_TMP, S_TMP, WS_ACT))
    a("s_cmp_eq_u32 s%d, 0" % S_WC)
    a("s_cbranch_scc0 L_ffn_epi1")
    n0 = NST[0]
    for wc in range(2):
        NST[0] = n0
        if wc == 1:
            a.label("L_ffn_epi1")
        t = 0
        while t < 7:
            T = 7 * wc + t
            if T % 2 == 0 and t + 1 < 7:
                pr = T >> 1
                for u in range(8):
                    r0, r1 = acc(cfg, t, u), acc(cfg, t + 1, u)
                    pack_pair(a, r0, r1, True)
                    if u % 4 == 0:
                        a("s_add_u32 s%d, s%d, 0x%x" % (S_T2, S_TMP, pr * 16384 + u * 1024))
                    a("buffer_store_dwordx4 %s, v%d, s[%d:%d], s%d offen offset:%d" % (
                        vr(r0, 4), V_L16, SRD_O, SRD_O + 3, S_T2, (u % 4) * 1024))
                t += 2
            else:
                pr = T >> 1
                for u in range(8):
                    r0 = acc(cfg, t, u)
                    a("v_cvt_pk_bf16_f32 v%d, v%d, v%d" % (r0, r0, r0 + 1))
                    a("v_cvt_pk_bf16_f32 v%d, v%d, v%d" % (r0 + 1, r0 + 2, r0 + 3))
                    a("v_pk_max_i16 v%d, v%d, 0" % (r0, r0))
                    a("v_pk_max_i16 v%d, v%d, 0" % (r0 + 1, r0 + 1))
                    if u % 4 == 0:
                        a("s_add_u32 s%d, s%d, 0x%x" % (S_T2, S_TMP, pr * 16384 + u * 1024))
                    a("buffer_store_dwordx2 %s, v%d, s[%d:%d], s%d offen offset:%d" % (
                        vr(r0, 2), V_L16, SRD_O, SRD_O + 3, S_T2, (u % 4) * 1024 + 8 * (T % 2)))
                t += 1
        stamp(a, 4)
        if STAMPS:
            a("s_waitcnt vmcnt(0)")
        stamp(a, 5)
        stamp(a, 6, True)
        stamp_flush(a, 7, SRD_O)
        a("s_endpgm")


def gen_k1(name="k1_kernel", RA=3, split_a=True, pfd=0):
    global PFD
    PFD = pfd
    a = Asm()
    a.raw(kernel_header(name).rstrip("\n"))
    a("s_cmp_ge_u32 s2, 256")
    a("s_cbranch_scc1 L_k1_exit")
    stamp(a, 0, True)
    stamp(a, 1)
    load_kernargs(a)
    code_pf(a, "k1", name, "L_k1_end", 0, V_PF, V_PD, 18000, True)
    a("v_and_b32 v%d, 63, v0" % V_LANE)
    a("v_lshrrev_b32 v1, 6, v0")
    a("s_nop 0")
    a("v_readfirstlane_b32 s%d, v1" % S_WAVE)
    if MAP2:
        a("s_and_b32 s3, s2, 1")
        a("s_lshl_b32 s3, s3, 2")
        a("s_bfe_u32 s4, s2, 0x20003")
        a("s_add_u32 s%d, s3, s4" % S_MT)
        a("s_bfe_u32 s3, s2, 0x20001")
        a("s_lshl_b32 s3, s3, 2")
        a("s_bfe_u32 s4, s2, 0x20005")
        a("s_add_u32 s%d, s3, s4" % S_NT)
        a("s_lshr_b32 s4, s2, 6")
    else:
        a("s_and_b32 s3, s2, 7")
        a("s_lshr_b32 s4, s2, 3")
        a("s_and_b32 s%d, s4, 7" % S_MT)
        a("s_lshr_b32 s4, s4, 3")
        a("s_and_b32 s5, s4, 1")
        a("s_lshl_b32 s3, s3, 1")
        a("s_add_u32 s%d, s3, s5" % S_NT)
    a("s_lshr_b32 s%d, s%d, 1" % (S_WR, S_WAVE))
    a("s_and_b32 s%d, s%d, 1" % (S_WC, S_WAVE))
    a("s_mov_b32 s7, s4")
    a("s_waitcnt lgkmcnt(0)")
    if PFD:
        pf_setup(a)
    a("s_cmp_ge_u32 s7, 2")
    a("s_cbranch_scc1 L_k1_ffn")
    n0 = NST[0]
    cq = G1Cfg("qkv", RA, split_a)
    cq.verify()
    gen_prologue(a, cq)
    gen_main(a, cq, "k1q")
    gen_epilogue_qkv(a, cq)
    if PF2 in (True, "end"):
        pf2_final(a)
    stamp(a, 4)
    if STAMPS:
        a("s_waitcnt vmcnt(0)")
    stamp(a, 5)
    stamp(a, 6, True)
    stamp_flush(a, 7, SRD_O)
    a.label("L_k1_exit")
    a("s_endpgm")
    a.label("L_k1_ffn")
    NST[0] = n0
    cf = G1Cfg("ffn", RA, split_a)
    cf.verify()
    gen_prologue(a, cf)
    gen_main(a, cf, "k1f")
    gen_epilogue_ffn(a, cf)
    a.label("L_k1_end")
    lds = max(cq.LDS, cf.LDS)
    return a.text(), kernel_desc(name, 256 + 92, 256, 100), lds


if __name__ == "__main__":
    t, d, lds = gen_k1()
    print(t)
    print(d)
    print(lds)
```

```python
from asmlib import *
from gen_k1 import (WS_Q, WS_K, WS_V, WS_ACT, WS_G, WS_PART, WS_SIZE, S_WS, S_WO, S_W2, S_OUT, load_kernargs, srd_ws,
                    stamp, stamp_flush)
import gen_k1

from gen_k1 import WS_FL
WS_EX = WS_PART

SRD_A, SRD_W, SRD_O = 36, 40, 44
S_MT, S_NT, S_WAVE, S_KS = 48, 49, 50, 51
S_HEAD, S_MTA, S_T0 = 52, 53, 54
S_TMP, S_T2, S_OFFA, S_OFFW, S_CNT, S_WDW, S_COL, S_W4K = 56, 57, 58, 59, 60, 61, 62, 63
S_MSK = 8
S_SPIN = 64
S_WEND, S_WBEG, S_ABEG = 65, 66, 67
ROT = True
BIG = 0xf149f2ca

NH, NO = 28, 8
NSTEP = 36
KV = 98304
V_S, V_P, V_O, V_SUM, V_CQ, V_CA, V_CB, V_ONE, V_MX, V_NM, V_AT, V_BIG = 0, 32, 40, 56, 64, 72, 80, 88, 92, 94, 96, 104
V_K, V_V = 128, 200
A_Q = 192
V_WF = 128
V_RB = 224
V_DW = 240
V_L16 = 242
V_RD = 243
V_OMG = 244
V_G = 248
V_T = 252
V_FL = 120


def acc(t, u):
    return (t * 4 + u) * 4


def S(buf, q, kt):
    return V_S + buf * 16 + q * 8 + kt * 4


def tiles(t):
    if t == 0:
        return [(0, 0, "A"), (0, 1, "Q"), (1, 1, "A")]
    if t == 8:
        return [(0, 0, "B"), (1, 0, "Q"), (1, 1, "B")]
    return [(0, 0, "Q"), (0, 1, "Q"), (1, 0, "Q"), (1, 1, "Q")]


def attention(a, fix, inst, side, mid=None):
    lg = Counter(15)
    T = V_AT
    AQ = A_Q + 8 * inst

    def slot():
        if side:
            side.pop(0)()

    def rdk(i):
        a("ds_read_b128 %s, v%d offset:%d" % (vr(V_K + 4 * i, 4), V_RD, 1024 * i))
        lg.issue(("K", i))

    def rdv(t):
        for dt in range(2):
            a("ds_read_b128 %s, v%d offset:%d" % (vr(V_V + 8 * (t % 3) + 4 * dt, 4), V_RD, 32768 + 2048 * t + 1024 * dt))
            lg.issue(("V", t, dt))

    def wait(pred):
        n = lg.need(pred)
        if n is not None:
            a(waitcnt(None, n))

    def fixup(pas, t):
        if t == 0:
            return
        lb = "%d_%d_%d" % (inst, pas, t)
        a("s_cmp_eq_u32 s%d, %d" % (S_T0, t))
        a("s_cbranch_scc1 L_af" + lb)
        a.label("L_ar" + lb)
        fix.label("L_af" + lb)
        fix("s_nop 1")
        if pas == 1:
            for i in range(4):
                fix("v_mov_b32 v%d, 0" % (V_CQ + i))
        else:
            for q in range(2):
                for i in range(4):
                    fix("v_mov_b32 v%d, v%d" % (V_CQ + 4 * q + i, V_NM + q))
        fix("s_nop 0")
        fix("s_branch L_ar" + lb)

    def qk(t, q, kt, ct, pas):
        c = {"Q": V_CQ, "A": V_CA, "B": V_CB}[ct] + (4 * q if pas == 2 else 0)
        wait(lambda tg: tg[0] == "K" and tg[1] == 2 * t + kt)
        a("v_mfma_f32_16x16x32_bf16 %s, %s, %s, %s" % (vr(S(t & 1, q, kt), 4), vr(V_K + 4 * (2 * t + kt), 4),
                                                      ar(AQ + 4 * q, 4), vr(c, 4)))

    for i in range(8):
        rdk(i)
    a("s_cmp_eq_u32 s%d, 0" % S_T0)
    a("s_cselect_b32 s3, 0, 0x%x" % BIG)
    for i in range(4):
        a("v_mov_b32 v%d, s3" % (V_CQ + i))
    for i in range(4):
        m = sr(S_MSK + 2 * i, 2)
        a("v_cndmask_b32 v%d, v%d, v%d, %s" % (V_CA + i, V_BIG, V_CQ, m))
        a("v_cndmask_b32 v%d, 0, v%d, %s" % (V_CB + i, V_BIG, m))
    for q in range(2):
        a("v_mov_b32 v%d, v%d" % (V_MX + q, V_BIG))
    nk = 8
    for t in range(10):
        ms = tiles(t) if t < 9 else []
        vs = []
        if t >= 1:
            for (q, kt, _) in tiles(t - 1):
                b = S((t - 1) & 1, q, kt)
                vs.append("v_max3_f32 v%d, v%d, v%d, v%d" % (V_MX + q, V_MX + q, b, b + 1))
                vs.append("v_max3_f32 v%d, v%d, v%d, v%d" % (V_MX + q, V_MX + q, b + 2, b + 3))
        if t < 9:
            fixup(1, t)
        for i, (q, kt, ct) in enumerate(ms):
            qk(t, q, kt, ct, 1)
            if nk < 18 and i < 2:
                rdk(nk)
                nk += 1
            if i >= 1:
                for _ in range(3):
                    if vs:
                        a(vs.pop(0))
        for v in vs:
            a(v)
        if t % 2 == 1:
            slot()
    if mid:
        mid()
    rdv(0)
    rdv(1)
    for sw in ("v_permlane32_swap_b32", "v_permlane16_swap_b32"):
        for q in range(2):
            a("v_mov_b32 v%d, v%d" % (T + q, V_MX + q))
        for q in range(2):
            a("%s v%d, v%d" % (sw, V_MX + q, T + q))
        for q in range(2):
            a("v_max_f32 v%d, v%d, v%d" % (V_MX + q, V_MX + q, T + q))
    for q in range(2):
        a("v_sub_f32 v%d, 0, v%d" % (V_NM + q, V_MX + q))
    a("s_cmp_eq_u32 s%d, 0" % S_T0)
    a("s_cselect_b64 vcc, -1, 0")
    for q in range(2):
        for i in range(4):
            a("v_cndmask_b32 v%d, v%d, v%d, vcc" % (V_CQ + 4 * q + i, V_BIG, V_NM + q))
    for q in range(2):
        for i in range(4):
            m = sr(S_MSK + 2 * i, 2)
            a("v_cndmask_b32 v%d, v%d, v%d, %s" % (V_CA + 4 * q + i, V_BIG, V_CQ + 4 * q, m))
            a("v_cndmask_b32 v%d, v%d, v%d, %s" % (V_CB + 4 * q + i, V_NM + q, V_BIG, m))
    a("v_mov_b32 v%d, 0" % (V_P + 4))
    a("v_mov_b32 v%d, 0" % (V_P + 5))
    for (q, kt, ct) in tiles(0):
        qk(0, q, kt, ct, 2)

    def pv(t, q):
        out = []
        for dt in range(2):
            def f(dt=dt):
                wait(lambda tg: tg[0] == "V" and tg[1] == t and tg[2] == dt)
                d = vr(V_O + 8 * q + 4 * dt, 4)
                a("v_mfma_f32_16x16x32_bf16 %s, %s, %s, %s" % (d, vr(V_V + 8 * (t % 3) + 4 * dt, 4), vr(V_P + 4 * q, 4),
                                                              d if t > 0 else "0"))
            out.append(f)

        def g():
            d = vr(V_SUM + 4 * q, 4)
            a("v_mfma_f32_16x16x32_bf16 %s, %s, %s, %s" % (d, vr(V_ONE, 4), vr(V_P + 4 * q, 4), d if t > 0 else "0"))
        out.append(g)
        return out

    for t in range(9):
        tl = tiles(t)
        ev = {0: [], 1: []}
        cv = {0: [], 1: []}
        for (q, kt, _) in tl:
            b = S(t & 1, q, kt)
            for i in range(4):
                ev[q].append("v_exp_f32 v%d, v%d" % (b + i, b + i))
            for i in range(2):
                cv[q].append("v_cvt_pk_bf16_f32 v%d, v%d, v%d" % (V_P + 4 * q + 2 * kt + i, b + 2 * i, b + 2 * i + 1))
        if t == 8:
            cv[0].append("v_mov_b32 v%d, 0" % (V_P + 2))
            cv[0].append("v_mov_b32 v%d, 0" % (V_P + 3))
        m1 = pv(t - 1, 1) if t > 0 else []
        if t < 8:
            tn = tiles(t + 1)
            for ii, (q, kt, ct) in enumerate(tn):
                def h(q=q, kt=kt, ct=ct, t=t, ii=ii):
                    if ii == 0:
                        fixup(2, t + 1)
                    qk(t + 1, q, kt, ct, 2)
                m1.append(h)
        v1 = ev[0] + cv[0] + ev[1][:2]
        v2 = ev[1][2:] + cv[1]
        m2 = pv(t, 0)
        for lst_m, lst_v in ((m1, v1), (m2, v2)):
            nm_, nv_ = len(lst_m), len(lst_v)
            k = 0
            for i, f in enumerate(lst_m):
                f()
                tgt = (i + 1) * nv_ // nm_
                while k < tgt:
                    a(lst_v[k])
                    k += 1
            while k < nv_:
                a(lst_v[k])
                k += 1
            if lst_m is m1 and t + 2 <= 8:
                rdv(t + 2)
            slot()
    for f in pv(8, 1):
        f()
    for q in range(2):
        a("v_rcp_f32 v%d, v%d" % (T + q, V_SUM + 4 * q))
        a("v_mul_f32 v%d, v%d, v%d" % (T + q, T + q, V_G + 2 * inst + q))
        o = V_O + 8 * q
        for i in range(8):
            a("v_mul_f32 v%d, v%d, v%d" % (o + i, o + i, T + q))
        for i in range(4):
            a("v_cvt_pk_bf16_f32 v%d, v%d, v%d" % (o + i, o + 2 * i, o + 2 * i + 1))
        yield ("buffer_store_dwordx4 %s, v%d, s[%d:%d], s%d offen offset:%d sc1" % (
            vr(o, 4), V_L16, SRD_O, SRD_O + 3, S_TMP, 1024 * (2 * inst + q)))


class G2:
    def __init__(self, R=12, L=10, BP=2):
        self.R, self.L, self.BP = R, L, BP
        self.vm = Counter(63)
        self.lg = Counter(15)

    def loads(self, s):
        out = []
        slot = s % self.R
        for i in range(2):
            pre = ["s_add_u32 m0, s%d, 0x%x" % (S_WDW, slot * 8192)] if i == 0 else []
            out.append((pre, "buffer_load_dwordx4 v%d, s[%d:%d], s%d offen%s lds" % (
                V_DW + i, SRD_W, SRD_W + 3, S_OFFW, " offset:1024" if i else ""), ("W", s)))
        for u in range(4):
            out.append(([], "buffer_load_dwordx4 %s, v%d, s[%d:%d], s%d offen offset:%d sc1" % (
                ar(slot * 16 + 4 * u, 4), V_L16, SRD_A, SRD_A + 3, S_OFFA, 1024 * u), ("A", s, u)))
        return out

    def adv(self):
        return ["s_add_u32 s%d, s%d, 0x4000" % (S_OFFA, S_OFFA), "s_add_u32 s%d, s%d, 0x10000" % (S_OFFW, S_OFFW),
                "s_cmp_eq_u32 s%d, s%d" % (S_OFFW, S_WEND),
                "s_cselect_b32 s%d, s%d, s%d" % (S_OFFW, S_WBEG, S_OFFW),
                "s_cselect_b32 s%d, s%d, s%d" % (S_OFFA, S_ABEG, S_OFFA)]

    def emit(self, a, d):
        pre, ins, tag = d
        if len(self.vm.ops) >= 63:
            a("s_waitcnt vmcnt(62)")
            self.vm.ops = self.vm.ops[-62:]
        for p in pre:
            a(p)
        if pre:
            a("s_nop 0")
        a(ins)
        self.vm.issue(tag)

    def rdw(self, a, s, t, jj):
        slot = s % self.R
        off = slot * 8192 + jj * 4096
        base = V_RB + t + (8 if off >= 65536 else 0)
        a("ds_read_b64_tr_b16 %s, v%d offset:%d" % (vr(V_WF + 4 * t + 2 * jj, 2), base, off % 65536))
        self.lg.issue(("W", s, t))

    def barrier(self, a, j):
        nv = self.vm.need(lambda tg: tg[0] == "W" and tg[1] <= j + self.BP)
        nl = self.lg.need(lambda tg: True)
        w = waitcnt(nv, nl)
        if w:
            a(w)
        a("s_barrier")

    def step(self, a, j, loads=True):
        nm = 32
        side = [[] for _ in range(nm + 1)]
        if j % self.BP == 0:
            side[4].append(("bar",))
        for t in range(8):
            for jj in range(2):
                side[(t + 1) * 4 + jj if t < 7 else nm].append(("rw", t, jj))
        ld = self.loads(j + self.L) if loads else []
        for i, p in enumerate(self.adv() if loads else []):
            side[1 + min(i, 2)].append(("s", p))
        for i, d in enumerate(ld):
            side[6 + 4 * i].append(("ld", d))
        for i in range(nm + 1):
            for it in side[i]:
                if it[0] == "s":
                    a(it[1])
                elif it[0] == "bar":
                    self.barrier(a, j)
                elif it[0] == "rw":
                    self.rdw(a, j + 1, it[1], it[2])
                elif it[0] == "ld":
                    self.emit(a, it[1])
            if i < nm:
                t, u = i // 4, i % 4
                nl = self.lg.need(lambda tg: tg[1] == j and tg[2] == t)
                nv = self.vm.need(lambda tg: tg[0] == "A" and tg[1] == j and tg[2] == u)
                w = waitcnt(nv, nl)
                if w:
                    a(w)
                d = vr(acc(t, u), 4)
                a("v_mfma_f32_16x16x32_bf16 %s, %s, %s, %s" % (d, vr(V_WF + 4 * t, 4), ar((j % self.R) * 16 + 4 * u, 4), d))


def gen_k23(name="k23_kernel", R=12, L=10, BP=2, POLL=4, ring_late=False, skip=5):
    g = G2(R, L, BP)
    a = Asm()
    fix = Asm()
    T = V_T
    NIT = NSTEP // R
    a.raw(kernel_header(name).rstrip("\n"))
    a("s_cmp_ge_u32 s2, 256")
    a("s_cbranch_scc1 L_k23_exit")
    stamp(a, 0, True)
    stamp(a, 1)
    load_kernargs(a)
    for _ in range(gen_k1.code_pf(a, "k23", name, "L_k23_end", 0, 2, 3, 22000, True)):
        g.vm.issue(("K", -1))
    a("v_lshrrev_b32 v1, 6, v0")
    a("v_and_b32 v0, 63, v0")
    a("v_readfirstlane_b32 s%d, v1" % S_WAVE)
    a("v_lshlrev_b32 v%d, 4, v0" % V_L16)
    if gen_k1.MAP2:
        a("s_bfe_u32 s3, s2, 0x20001")
        a("s_lshl_b32 s3, s3, 3")
        a("s_bfe_u32 s4, s2, 0x30003")
        a("s_add_u32 s%d, s3, s4" % S_HEAD)
        a("s_and_b32 s3, s2, 1")
        a("s_lshl_b32 s3, s3, 2")
        a("s_lshr_b32 s4, s2, 6")
        a("s_add_u32 s%d, s3, s4" % S_MTA)
    else:
        a("s_and_b32 s3, s2, 7")
        a("s_lshl_b32 s3, s3, 2")
        a("s_bfe_u32 s4, s2, 0x20003")
        a("s_add_u32 s%d, s3, s4" % S_HEAD)
        a("s_lshr_b32 s%d, s2, 5" % S_MTA)
    a("s_lshl_b32 s3, s%d, 17" % S_HEAD)
    a("s_lshl_b32 s4, s%d, 14" % S_MTA)
    a("s_add_u32 s3, s3, s4")
    a("s_lshl_b32 s5, s%d, 13" % S_WAVE)
    a("s_add_u32 s4, s4, s5")
    a("s_cmp_lt_u32 s4, 0x4000")
    a("s_cselect_b32 s4, 0, 0x4000")
    a("s_add_u32 s6, s3, s5")
    a("s_sub_u32 s6, s6, s4")
    a("s_add_u32 s6, s6, 0x%x" % WS_K)
    a("s_lshl_b32 s%d, s%d, 12" % (S_W4K, S_WAVE))
    a("s_add_u32 s7, s3, s%d" % S_W4K)
    a("s_add_u32 m0, s5, 0x%x" % KV)
    a("s_waitcnt lgkmcnt(0)")
    srd_ws(a, SRD_O)

    def kvdma(n):
        for h in range(2):
            for i in range(4):
                a("buffer_load_dwordx4 v%d, s[%d:%d], s6 offen offset:%d lds" % (V_L16, SRD_O, SRD_O + 3, 1024 * i))
                g.vm.issue((n, -1))
            if h == 0:
                a("s_add_u32 m0, m0, 0x1000")
                a("s_add_u32 s6, s6, 0x1000")
    kvdma("K")
    for q in range(4):
        a("buffer_load_dwordx4 %s, v%d, s[%d:%d], s7 offen offset:%d" % (ar(A_Q + 4 * q, 4), V_L16, SRD_O, SRD_O + 3, 1024 * q))
        g.vm.issue(("K", -1))
    a("s_add_u32 m0, m0, 0x7000")
    a("s_add_u32 s6, s6, 0x%x" % (WS_V - WS_K - 0x1000))
    kvdma("V")
    a("s_bfe_u32 s%d, s2, 0x20001" % S_KS)
    a("s_and_b32 s3, s2, 1")
    a("s_lshl_b32 s3, s3, 2")
    a("s_lshr_b32 s4, s2, 6")
    a("s_add_u32 s%d, s3, s4" % S_MT)
    a("s_bfe_u32 s%d, s2, 0x30003" % S_NT)
    a("v_and_b32 v%d, 15, v0" % (T + 1))
    a("v_lshlrev_b32 v%d, 2, v%d" % (T + 2, T + 1))
    a("s_lshl_b32 s5, s%d, 8" % S_WAVE)
    a("s_lshl_b32 s3, s%d, 10" % S_MTA)
    a("s_add_u32 s3, s3, s5")
    a("s_add_u32 s3, s3, 0x%x" % WS_G)
    a("s_lshl_b32 s4, s%d, 10" % S_MT)
    a("s_add_u32 s4, s4, s5")
    a("s_add_u32 s4, s4, 0x%x" % (WS_G + 8192))
    for u in range(4):
        a("buffer_load_dword v%d, v%d, s[%d:%d], s3 offen offset:%d" % (V_G + u, T + 2, SRD_O, SRD_O + 3, 64 * u))
        g.vm.issue(("V", -1))
    for u in range(4):
        a("buffer_load_dword v%d, v%d, s[%d:%d], s4 offen offset:%d" % (V_OMG + u, T + 2, SRD_O, SRD_O + 3, 64 * u))
        g.vm.issue(("V", -1))
    a("v_lshrrev_b32 v%d, 4, v0" % T)
    a("s_lshl_b32 s3, s%d, 14" % S_WAVE)
    a("v_lshlrev_b32 v%d, 1, v%d" % (T + 2, T))
    a("v_xor_b32 v%d, v%d, v%d" % (T + 2, T + 2, T + 1))
    a("v_lshlrev_b32 v%d, 11, v%d" % (T + 3, T))
    a("v_add_u32 v%d, s3, v%d" % (T + 3, T + 3))
    a("v_lshl_add_u32 v%d, v%d, 4, v%d" % (V_DW, T + 2, T + 3))
    a("v_xor_b32 v%d, 0x80, v%d" % (V_DW + 1, V_DW))
    a("v_add_u32 v%d, 0x%x, v%d" % (V_DW + 1, 4 * 2048 - 1024, V_DW + 1))
    a("s_lshl_b32 s%d, s%d, 11" % (S_WDW, S_WAVE))
    a("v_lshlrev_b32 v%d, 2, v%d" % (T, T))
    a("v_sub_u32 v%d, v%d, v%d" % (T, T + 1, T))
    for i in range(4):
        a("v_cmp_lt_i32 %s, v%d, %d" % (sr(S_MSK + 2 * i, 2), T, i))
    a("s_mul_i32 s5, s%d, %d" % (S_KS, NH))
    a("s_add_u32 s6, s5, 32")
    a("s_lshl_b32 s%d, s6, 14" % S_ABEG)
    a("s_add_u32 s%d, s%d, s%d" % (S_ABEG, S_ABEG, S_W4K))
    a("s_lshl_b32 s%d, s5, 16" % S_WBEG)
    a("s_add_u32 s%d, s%d, 0x%x" % (S_WEND, S_WBEG, NH << 16))
    a("s_mul_i32 s5, s%d, 7" % S_NT)
    a("s_lshr_b32 s5, s5, 1")
    a("s_and_b32 s6, s%d, 3" % S_MT)
    a("s_mul_i32 s6, s6, 7")
    a("s_add_u32 s5, s5, s6")
    a("s_cmp_ge_u32 s5, %d" % NH)
    a("s_cselect_b32 s6, %d, 0" % NH)
    a("s_sub_u32 s5, s5, s6")
    if not ROT:
        a("s_mov_b32 s5, 0")
    a("s_lshl_b32 s6, s5, 14")
    a("s_add_u32 s%d, s%d, s6" % (S_OFFA, S_ABEG))
    a("s_lshl_b32 s6, s5, 16")
    a("s_add_u32 s%d, s%d, s6" % (S_OFFW, S_WBEG))
    a("s_mul_i32 s7, s%d, 0x%x" % (S_MT, 144 * 16384))
    a("s_add_u32 s7, s7, 0x%x" % WS_ACT)
    a("s_lshl_b32 s%d, s%d, 8" % (S_COL, S_NT))
    a("s_add_u32 s%d, s%d, s%d" % (SRD_W, S_W2, S_COL))
    a("s_addc_u32 s%d, s%d, 0" % (SRD_W + 1, S_W2 + 1))
    a("s_and_b32 s%d, s%d, 0xffff" % (SRD_W + 1, SRD_W + 1))
    a("s_sub_u32 s%d, 0x700000, s%d" % (SRD_W + 2, S_COL))
    a("s_mov_b32 s%d, 0x20000" % (SRD_W + 3))
    a("s_add_u32 s%d, s%d, s7" % (SRD_A, S_WS))
    a("s_addc_u32 s%d, s%d, 0" % (SRD_A + 1, S_WS + 1))
    a("s_and_b32 s%d, s%d, 0xffff" % (SRD_A + 1, SRD_A + 1))
    a("s_mov_b32 s%d, 0x%x" % (SRD_A + 2, 144 * 16384))
    a("s_mov_b32 s%d, 0x20000" % (SRD_A + 3))
    a("v_bfe_u32 v%d, v0, 2, 4" % (T + 2))
    a("v_and_b32 v%d, 7, v%d" % (T + 3, T + 2))
    a("v_lshlrev_b32 v%d, 8, v%d" % (T + 2, T + 2))
    a("v_lshl_add_u32 v%d, v%d, 5, v%d" % (T + 2, T + 3, T + 2))
    a("v_and_b32 v%d, 3, v0" % (T + 3))
    a("v_lshl_add_u32 v%d, v%d, 3, v%d" % (T + 2, T + 3, T + 2))
    a("s_lshl_b32 s3, s%d, 6" % S_KS)
    for t in range(8):
        if t:
            a("s_add_u32 s3, s3, 32")
            a("s_and_b32 s3, s3, 0xff")
        a("v_xor_b32 v%d, s3, v%d" % (V_RB + t, T + 2))
        a("v_add_u32 v%d, 0x10000, v%d" % (V_RB + 8 + t, V_RB + t))
    a("v_mov_b32 v%d, 0x%x" % (V_BIG, BIG))
    for i in range(4):
        a("v_mov_b32 v%d, 0x3f803f80" % (V_ONE + i))
    a("s_add_u32 s3, s%d, 0x%x" % (S_W4K, KV))
    a("v_add_u32 v%d, s3, v%d" % (V_RD, V_L16))
    a("s_lshl_b32 s3, s%d, 3" % S_MTA)
    a("s_lshl_b32 s4, s%d, 1" % S_WAVE)
    a("s_add_u32 s3, s3, s4")
    a("s_sub_i32 s%d, 8, s3" % S_T2)
    a("s_max_i32 s%d, s%d, 0" % (S_T0, S_T2))
    a("s_mul_i32 s3, s%d, 144" % S_MTA)
    a("s_add_u32 s3, s3, s%d" % S_HEAD)
    a("s_lshl_b32 s3, s3, 14")
    a("s_add_u32 s3, s3, s%d" % S_W4K)
    a("s_add_u32 s%d, s3, 0x%x" % (S_TMP, WS_ACT))
    stamp(a, 2)
    a(waitcnt(g.vm.need(lambda tg: tg[0] == "K"), None))
    a("s_barrier")
    stamp(a)
    items = []
    for s in range(R):
        ld = g.loads(s)
        for i in range(0, 6, 2):
            def f(ld=ld, i=i, s=s):
                g.emit(a, ld[i])
                g.emit(a, ld[i + 1])
                if i == 4 and s < R - 1:
                    for p in g.adv():
                        a(p)
            items.append(f)

    def mid():
        stamp(a)
        a(waitcnt(g.vm.need(lambda tg: tg[0] == "V"), None))
        a("s_barrier")
        stamp(a)
    side = [lambda: None] * skip + items
    if ring_late:
        side = []
    for inst in range(2):
        if inst == 1:
            stamp(a)
            a("v_add_u32 v%d, 0x800, v%d" % (V_RD, V_RD))
            a("s_sub_i32 s%d, s%d, 1" % (S_T2, S_T2))
            a("s_max_i32 s%d, s%d, 0" % (S_T0, S_T2))
        for st in attention(a, fix, inst, side, mid if inst == 0 else None):
            g.emit(a, ([], st, ("O", -1)))
    while side:
        side.pop(0)()
    stamp(a, 3)
    if ring_late:
        for f in items:
            f()
    for i in range(0, 128, 2):
        a("v_mov_b64 v[%d:%d], 0" % (i, i + 1))
    g.barrier(a, -BP)
    for t in range(8):
        for jj in range(2):
            g.rdw(a, 0, t, jj)
    a("s_mov_b32 s%d, %d" % (S_CNT, NIT))
    PEEL = R - L
    for j in range(PEEL):
        g.step(a, j, loads=False)
    stamp(a)
    a("s_waitcnt vmcnt(0)")
    g.vm.drain()
    a("s_barrier")
    stamp(a)
    a("s_cmp_eq_u32 s%d, 0" % S_WAVE)
    a("s_cbranch_scc0 L_k23_entry")
    a("s_lshl_b32 s3, s%d, 9" % S_MTA)
    a("s_lshr_b32 s4, s%d, 3" % S_HEAD)
    a("s_lshl_b32 s4, s4, 7")
    a("s_add_u32 s3, s3, s4")
    a("s_and_b32 s4, s%d, 7" % S_HEAD)
    a("s_lshl_b32 s4, s4, 2")
    a("s_add_u32 s3, s3, s4")
    a("s_add_u32 s3, s3, 0x%x" % WS_FL)
    a("v_mov_b32 v%d, 1" % T)
    a("s_mov_b64 exec, 1")
    a("buffer_store_dword v%d, v%d, s[%d:%d], s3 offen sc1" % (T, V_L16, SRD_O, SRD_O + 3))
    a("s_mov_b64 exec, -1")
    a("s_branch L_k23_entry")
    SW = NH - L
    hooks = {SW - POLL: "poll", SW: "sw", NH: "scale", NSTEP - L: "end"}
    bodies = []
    for it in range(3):
        b = Asm()
        for j in range(max(PEEL, R * it), R * it + R):
            if j % R == PEEL:
                b.label("L_k23_entry")
            for hs, hn in sorted(hooks.items()):
                if hs % R == j % R:
                    b("s_cmp_eq_u32 s%d, %d" % (S_CNT, NIT - hs // R))
                    b("s_cbranch_scc1 L_h_%s" % hn)
                    b.label("L_hr_%s" % hn)
            g.step(b, j)
        bodies.append(b.text())
    assert bodies[1] == bodies[2], "loop body not periodic"
    a.raw(".p2align 6")
    a.label("L_k23_loop")
    a.raw(bodies[2].rstrip("\n"))
    a("s_sub_u32 s%d, s%d, 1" % (S_CNT, S_CNT))
    a("s_cmp_lg_u32 s%d, 0" % S_CNT)
    a("s_cbranch_scc1 L_k23_loop")
    a("s_nop 7")
    stamp(a, 4)
    a("s_lshl_b32 s3, s%d, 3" % S_MT)
    a("s_add_u32 s3, s3, s%d" % S_NT)
    a("s_lshl_b32 s4, s3, 18")
    a("s_add_u32 s4, s4, s%d" % S_W4K)
    a("s_add_u32 s4, s4, 0x%x" % WS_EX)
    a("s_lshl_b32 s5, s%d, 14" % S_KS)
    a("s_add_u32 s5, s5, s4")
    for p in range(1, 4):
        a("s_add_u32 s6, s%d, %d" % (S_KS, p))
        a("s_and_b32 s6, s6, 3")
        a("s_lshl_b32 s6, s6, 16")
        a("s_add_u32 s6, s6, s5")
        for u in range(4):
            r0, r1 = acc(2 * p, u), acc(2 * p + 1, u)
            a("v_cvt_pk_f16_f32 v%d, v%d, v%d" % (r0, r0, r0 + 1))
            a("v_cvt_pk_f16_f32 v%d, v%d, v%d" % (r0 + 1, r0 + 2, r0 + 3))
            a("v_cvt_pk_f16_f32 v%d, v%d, v%d" % (r0 + 2, r1, r1 + 1))
            a("v_cvt_pk_f16_f32 v%d, v%d, v%d" % (r0 + 3, r1 + 2, r1 + 3))
            a("buffer_store_dwordx4 %s, v%d, s[%d:%d], s6 offen offset:%d sc1" % (vr(r0, 4), V_L16, SRD_O, SRD_O + 3, 1024 * u))
    a("v_lshrrev_b32 v%d, 4, v%d" % (T, V_L16))
    a("s_lshl_b32 s%d, s3, 7" % S_T2)
    a("s_add_u32 s%d, s%d, 0x%x" % (S_T2, S_T2, WS_FL + 4096))
    a("s_lshl_b32 s7, s%d, 2" % S_KS)
    a("s_add_u32 s7, s7, s%d" % S_T2)
    a("v_mov_b32 v%d, 1" % (T + 1))
    a("v_lshlrev_b32 v%d, 2, v%d" % (T + 2, T))
    a("v_and_b32 v%d, 12, v%d" % (T + 2, T + 2))
    a("s_waitcnt vmcnt(0)")
    a("s_barrier")
    a("s_cmp_eq_u32 s%d, 0" % S_WAVE)
    a("s_cbranch_scc0 L_ex_nf")
    a("s_mov_b64 exec, 1")
    a("buffer_store_dword v%d, v%d, s[%d:%d], s7 offen sc1" % (T + 1, V_L16, SRD_O, SRD_O + 3))
    a("s_mov_b64 exec, -1")
    a.label("L_ex_nf")
    a("s_mov_b32 s%d, s%d" % (SRD_W, S_OUT))
    a("s_and_b32 s%d, s%d, 0xffff" % (SRD_W + 1, S_OUT + 1))
    a("s_mov_b32 s%d, 0x400000" % (SRD_W + 2))
    a("s_lshl_b32 s7, s%d, 19" % S_MT)
    a("s_lshl_b32 s6, s%d, 17" % S_WAVE)
    a("s_add_u32 s7, s7, s6")
    a("s_add_u32 s7, s7, s%d" % S_COL)
    a("s_lshl_b32 s6, s%d, 6" % S_KS)
    a("s_add_u32 s7, s7, s6")
    a("v_and_b32 v%d, 15, v%d" % (V_RD, T))
    a("v_lshlrev_b32 v%d, 11, v%d" % (V_RD, V_RD))
    a("v_bfe_u32 v%d, v%d, 4, 1" % (T + 3, T))
    a("v_lshl_add_u32 v%d, v%d, 5, v%d" % (V_RD, T + 3, V_RD))
    a("v_bfe_u32 v%d, v%d, 5, 1" % (T + 3, T))
    a("v_lshl_add_u32 v%d, v%d, 4, v%d" % (V_RD, T + 3, V_RD))
    a("s_lshl_b32 s6, s%d, 16" % S_KS)
    a("s_add_u32 s4, s4, s6")
    a("s_mov_b32 s%d, 0x8000" % S_SPIN)
    a.label("L_ex_poll")
    a("buffer_load_dword v%d, v%d, s[%d:%d], s%d offen sc1" % (T + 3, T + 2, SRD_O, SRD_O + 3, S_T2))
    a("s_sub_u32 s%d, s%d, 1" % (S_SPIN, S_SPIN))
    a("s_waitcnt vmcnt(0)")
    a("v_cmp_ne_u32 vcc, 1, v%d" % (T + 3))
    a("s_cmp_eq_u32 s%d, 0" % S_SPIN)
    a("s_cbranch_scc1 L_ex_go")
    a("s_nop 1")
    a("s_cbranch_vccnz L_ex_poll")
    a.label("L_ex_go")
    stamp(a, 5)
    X = 32
    for p in range(1, 4):
        a("s_add_u32 s6, s%d, %d" % (S_KS, p))
        a("s_and_b32 s6, s6, 3")
        a("s_lshl_b32 s6, s6, 14")
        a("s_add_u32 s6, s6, s4")
        for u in range(4):
            a("buffer_load_dwordx4 %s, v%d, s[%d:%d], s6 offen offset:%d sc1" % (
                vr(X + (u * 3 + p - 1) * 4, 4), V_L16, SRD_O, SRD_O + 3, 1024 * u))
    for u in range(4):
        a("s_waitcnt vmcnt(3)")
        r0, r1 = acc(0, u), acc(1, u)
        for p in range(3):
            x = X + (u * 3 + p) * 4
            for i in range(4):
                d = (r0 if i < 2 else r1) + 2 * (i & 1)
                a("v_fma_mix_f32 v%d, v%d, 1.0, v%d op_sel_hi:[1,0,0]" % (d, x + i, d))
                a("v_fma_mix_f32 v%d, v%d, 1.0, v%d op_sel:[1,0,0] op_sel_hi:[1,0,0]" % (d + 1, x + i, d + 1))
        a("v_cvt_pk_bf16_f32 v%d, v%d, v%d" % (r0, r0, r0 + 1))
        a("v_cvt_pk_bf16_f32 v%d, v%d, v%d" % (r0 + 1, r0 + 2, r0 + 3))
        a("v_cvt_pk_bf16_f32 v%d, v%d, v%d" % (r0 + 2, r1, r1 + 1))
        a("v_cvt_pk_bf16_f32 v%d, v%d, v%d" % (r0 + 3, r1 + 2, r1 + 3))
        a("v_permlane16_swap_b32 v%d, v%d" % (r0, r0 + 2))
        a("v_permlane16_swap_b32 v%d, v%d" % (r0 + 1, r0 + 3))
        a("s_nop 1")
        a("buffer_store_dwordx4 %s, v%d, s[%d:%d], s7 offen" % (vr(r0, 4), V_RD, SRD_W, SRD_W + 3))
        a("s_add_u32 s7, s7, 0x8000")
    if gen_k1.STAMPS:
        a("s_waitcnt vmcnt(0)")
        stamp(a)
        stamp(a, 6, True)
        stamp_flush(a, 7, SRD_O)
    a.label("L_k23_exit")
    a("s_endpgm")
    a.label("L_h_poll")
    a("s_lshl_b32 s3, s%d, 9" % S_MT)
    a("s_lshl_b32 s4, s%d, 7" % S_KS)
    a("s_add_u32 s3, s3, s4")
    a("s_add_u32 s%d, s3, 0x%x" % (S_T2, WS_FL))
    a("v_lshrrev_b32 v%d, 2, v%d" % (T + 1, V_L16))
    a("v_and_b32 v%d, 28, v%d" % (T + 1, T + 1))
    a("buffer_load_dword v%d, v%d, s[%d:%d], s%d offen sc1" % (T + 2, T + 1, SRD_O, SRD_O + 3, S_T2))
    a("s_branch L_hr_poll")
    a.label("L_h_sw")
    a("s_mov_b32 s%d, 0x8000" % S_SPIN)
    a("s_waitcnt vmcnt(%d)" % (6 * POLL))
    a.label("L_sw_chk")
    a("v_cmp_ne_u32 vcc, 1, v%d" % (T + 2))
    a("s_sub_u32 s%d, s%d, 1" % (S_SPIN, S_SPIN))
    a("s_cmp_eq_u32 s%d, 0" % S_SPIN)
    a("s_cbranch_scc1 L_sw_go")
    a("s_nop 1")
    a("s_cbranch_vccz L_sw_go")
    a("buffer_load_dword v%d, v%d, s[%d:%d], s%d offen sc1" % (T + 2, T + 1, SRD_O, SRD_O + 3, S_T2))
    a("s_waitcnt vmcnt(0)")
    a("s_branch L_sw_chk")
    a.label("L_sw_go")
    a("s_lshl_b32 s3, s%d, 3" % S_KS)
    a("s_lshl_b32 s%d, s3, 14" % S_ABEG)
    a("s_add_u32 s%d, s%d, s%d" % (S_ABEG, S_ABEG, S_W4K))
    a("s_lshl_b32 s%d, s3, 16" % S_WBEG)
    a("s_add_u32 s%d, s%d, 0x%x" % (S_WEND, S_WBEG, NO << 16))
    a("s_lshl_b32 s4, s%d, 1" % S_MT)
    a("s_add_u32 s4, s4, s%d" % S_NT)
    a("s_and_b32 s4, s4, %d" % (7 if ROT else 0))
    a("s_lshl_b32 s3, s4, 14")
    a("s_add_u32 s%d, s%d, s3" % (S_OFFA, S_ABEG))
    a("s_lshl_b32 s3, s4, 16")
    a("s_add_u32 s%d, s%d, s3" % (S_OFFW, S_WBEG))
    a("s_add_u32 s%d, s%d, s%d" % (SRD_W, S_WO, S_COL))
    a("s_addc_u32 s%d, s%d, 0" % (SRD_W + 1, S_WO + 1))
    a("s_and_b32 s%d, s%d, 0xffff" % (SRD_W + 1, SRD_W + 1))
    a("s_sub_u32 s%d, 0x200000, s%d" % (SRD_W + 2, S_COL))
    a("s_branch L_hr_sw")
    a.label("L_h_end")
    a("s_mov_b32 s%d, 0" % (SRD_W + 2))
    a("s_mov_b32 s%d, 0" % (SRD_A + 2))
    a("s_branch L_hr_end")
    a.label("L_h_scale")
    a("s_nop 7")
    for t in range(8):
        for u in range(4):
            r = acc(t, u)
            for i in range(4):
                a("v_mul_f32 v%d, v%d, v%d" % (r + i, r + i, V_OMG + u))
    a("s_nop 1")
    a("s_branch L_hr_scale")
    a.extend(fix)
    a.label("L_k23_end")
    a.lines = fix_hazards("\n".join(a.lines).split("\n"), True)
    return a.text(), kernel_desc(name, 512, 256, 100), 163840


if __name__ == "__main__":
    t, d, lds = gen_k23()
    print(t)
```

```python
import re
from asmlib import *
import gen_k1 as K1
import gen_k23 as K2
from gen_k1 import (WS_Q, WS_K, WS_V, WS_ACT, WS_G, WS_FL, S_WS, S_WO, S_W2, S_OUT, S_DBG, S_GATE, load_kernargs, srd_ws,
                    stamp, stamp_flush, SRD_A, SRD_W, SRD_O, S_MT, S_WAVE, V_LANE, V_DA, V_AL, V_W, V_W3)
from gen_k23 import (S_NT, S_KS, S_HEAD, S_T0, S_TMP, S_T2, S_OFFA, S_OFFW, S_CNT, S_WDW, S_COL, S_W4K, S_MSK, S_SPIN,
                     S_WEND, S_WBEG, S_ABEG, BIG, NH, NO, NSTEP, KV, V_BIG, V_ONE, A_Q, V_RB, acc, WS_EX)

K1.UNI = True
V_L16 = K1.V_L16
K2.V_L16 = V_L16
K2.V_T = V_T = 240
K2.V_DW = V_DW = 253
K2.V_RD = V_RD = 255
V_OMG, V_G = K2.V_OMG, K2.V_G
S_AEND = 55
S_KIND = 53
SRD_D = 96
A_KV = 128
A_H = 208
SPIN = 0x8000
V_PA, V_PV = 253, 254
V_HS = 255
SRD_P, S_POFF, S_PINC = 84, 88, 89
V_PF, V_PD = 251, 250
S_FM, S_H4, S_H2, S_FO = 84, 85, 86, 87
S_KM = 14
A_HS = 0
XL = 81920
NZ = 16
V_GL, V_GG, V_GA, V_GS, V_GX, V_GW, V_GT = 192, 193, 194, 195, 196, 198, 200

P = dict(R0=256, PROWS=2, W2D=6, PFW=True, PFW2=True, PFX=True, XLN=2, X0=4, LOCAL=True, CVT0=3, NS0=8, SPS=2)


def spin_check(a, tag, vaddr, vval, srd, soff, first_wait):
    a("s_mov_b32 s%d, 0x%x" % (S_SPIN, SPIN))
    if first_wait:
        a(first_wait)
    a.label("L_sp_" + tag)
    a("v_cmp_ne_u32 vcc, 1, v%d" % vval)
    a("s_sub_u32 s%d, s%d, 1" % (S_SPIN, S_SPIN))
    a("s_cmp_eq_u32 s%d, 0" % S_SPIN)
    a("s_cbranch_scc1 L_sg_" + tag)
    a("s_nop 1")
    a("s_cbranch_vccz L_sg_" + tag)
    a("buffer_load_dword v%d, v%d, s[%d:%d], %s offen sc1" % (vval, vaddr, srd, srd + 3, soff))
    a("s_waitcnt vmcnt(0)")
    a("s_branch L_sp_" + tag)
    a.label("L_sg_" + tag)


def flag_store(a, tag, sreg, vtmp):
    a("s_cmp_eq_u32 s%d, 0" % S_WAVE)
    a("s_cbranch_scc0 L_nf_" + tag)
    a("v_mov_b32 v%d, 1" % vtmp)
    a("s_mov_b64 exec, 1")
    a("buffer_store_dword v%d, v%d, s[%d:%d], s%d offen sc1" % (vtmp, V_L16, SRD_O, SRD_O + 3, sreg))
    a("s_mov_b64 exec, -1")
    a.label("L_nf_" + tag)


def pf_ins():
    return "buffer_load_dword v%d, v%d, s[%d:%d], s%d offen" % (V_PD, V_PF, SRD_P, SRD_P + 3, S_POFF)


def pf_setup(a, tag):
    T = K1.V_T
    PR = P["PROWS"]
    a("s_and_b32 s3, s2, 1")
    a("s_bfe_u32 s4, s2, 0x20001")
    a("s_lshr_b32 s5, s2, 3")
    a("s_lshl_b32 s3, s3, 5")
    a("s_add_u32 s3, s3, s5")
    a("s_mov_b32 s%d, 0x20000" % (SRD_P + 3))
    a("s_mov_b32 s90, 1")
    a("v_mov_b32 v%d, 0x70000000" % (T + 3))
    a("s_cmp_ge_u32 s%d, 2" % S_WAVE)
    a("s_cbranch_scc1 L_pfw_" + tag)
    a("s_cmp_eq_u32 s%d, 0" % S_WAVE)
    a("s_cbranch_scc1 L_pfx_" + tag)
    a("s_lshl_b32 s4, s4, 6")
    a("s_add_u32 s3, s3, s4")
    a("s_mul_i32 s3, s3, 0x7000")
    a("s_add_u32 s%d, s%d, s3" % (SRD_P, S_W2))
    a("s_addc_u32 s%d, s%d, 0" % (SRD_P + 1, S_W2 + 1))
    a("s_and_b32 s%d, s%d, 0xffff" % (SRD_P + 1, SRD_P + 1))
    a("s_movk_i32 s%d, 0x%x" % (SRD_P + 2, 0x7000 if P["PFW2"] else 0))
    a("s_movk_i32 s%d, 0x1000" % S_PINC)
    a("s_mov_b32 s%d, 0x%x" % (S_POFF, (-P["W2D"] * 4096) & 0xffffffff))
    a("v_lshlrev_b32 v%d, 7, v%d" % (T + 1, V_LANE))
    a("v_cmp_gt_u32 vcc, 32, v%d" % V_LANE)
    a("s_branch L_pfg_" + tag)
    a.label("L_pfx_" + tag)
    XLN = P["XLN"]
    a("s_and_b32 s3, s2, 1")
    a("s_lshl_b32 s3, s3, 21")
    a("s_lshl_b32 s4, s4, 19")
    a("s_lshl_b32 s5, s5, 14")
    a("s_add_u32 s3, s3, s4")
    a("s_add_u32 s3, s3, s5")
    a("s_add_u32 s%d, s%d, s3" % (SRD_P, K1.S_X))
    a("s_addc_u32 s%d, s%d, 0" % (SRD_P + 1, K1.S_X + 1))
    a("s_and_b32 s%d, s%d, 0xffff" % (SRD_P + 1, SRD_P + 1))
    a("s_movk_i32 s%d, 0x%x" % (SRD_P + 2, 0x4000 if P["PFX"] else 0))
    a("s_movk_i32 s%d, 0x%x" % (S_PINC, 128 * XLN))
    a("s_movk_i32 s%d, 0x%x" % (S_POFF, 128 * P["X0"]))
    a("s_movk_i32 s90, 0x800")
    assert (16 - P["X0"]) % XLN == 0
    a("v_lshrrev_b32 v%d, %d, v%d" % (T, XLN.bit_length() - 1, V_LANE))
    a("v_and_b32 v%d, %d, v%d" % (T + 1, XLN - 1, V_LANE))
    a("v_lshlrev_b32 v%d, 7, v%d" % (T + 1, T + 1))
    a("v_lshl_add_u32 v%d, v%d, 11, v%d" % (T + 1, T, T + 1))
    a("v_cmp_gt_u32 vcc, 8, v%d" % T)
    a("s_branch L_pfg_" + tag)
    a.label("L_pfw_" + tag)
    a("s_mul_i32 s3, s3, %d" % PR)
    a("s_add_u32 s3, s3, %d" % P["R0"])
    a("s_cmp_eq_u32 s%d, 3" % S_WAVE)
    a("s_cselect_b32 s%d, s%d, s%d" % (SRD_P, K1.S_W1, K1.S_WQKV))
    a("s_cselect_b32 s%d, s%d, s%d" % (SRD_P + 1, K1.S_W1 + 1, K1.S_WQKV + 1))
    a("s_movk_i32 s5, 6144")
    a("s_cselect_b32 s5, 7168, s5")
    a("s_movk_i32 s6, 512")
    a("s_cselect_b32 s6, 1792, s6")
    a("s_cselect_b32 s7, 14, 12")
    a("s_movk_i32 s8, 5462")
    a("s_cselect_b32 s8, 4682, s8")
    a("s_movk_i32 s9, 1536")
    a("s_cselect_b32 s9, 0, s9")
    a("s_and_b32 s%d, s%d, 0xffff" % (SRD_P + 1, SRD_P + 1))
    for n, m in ((12, 5462), (14, 4682)):
        assert all((q * m) >> 16 == q // n for q in range(64))
    a("s_lshl_b32 s%d, s5, 10" % (SRD_P + 2))
    if not P["PFW"]:
        a("s_mov_b32 s%d, 0" % (SRD_P + 2))
    a("s_mul_i32 s%d, s5, %d" % (S_PINC, 64 * PR))
    a("s_mul_i32 s3, s3, s5")
    a("s_mul_i32 s4, s4, s6")
    a("s_add_u32 s%d, s3, s4" % S_POFF)
    a("v_mul_u32_u24 v%d, s8, v%d" % (T, V_LANE))
    a("v_lshrrev_b32 v%d, 16, v%d" % (T, T))
    a("v_mul_u32_u24 v%d, s7, v%d" % (T + 1, T))
    a("v_sub_u32 v%d, v%d, v%d" % (T + 1, V_LANE, T + 1))
    a("v_lshrrev_b32 v%d, 2, v%d" % (T + 2, T + 1))
    a("v_mul_u32_u24 v%d, s9, v%d" % (T + 2, T + 2))
    a("v_lshl_add_u32 v%d, v%d, 7, v%d" % (T + 1, T + 1, T + 2))
    a("v_mul_u32_u24 v%d, s5, v%d" % (T + 2, T))
    a("v_add_u32 v%d, v%d, v%d" % (T + 1, T + 1, T + 2))
    a("v_cmp_gt_u32 vcc, %d, v%d" % (PR, T))
    a.label("L_pfg_" + tag)
    a("s_nop 1")
    a("v_cndmask_b32 v%d, v%d, v%d, vcc" % (V_PF, T + 3, T + 1))


def pro_common(a):
    T = K1.V_T
    a("v_lshrrev_b32 v%d, 3, v%d" % (T, V_LANE))
    a("s_lshl_b32 s3, s%d, 6" % S_WAVE)
    a("v_add_u32 v%d, s3, v%d" % (T, T))
    a("v_lshlrev_b32 v%d, 11, v%d" % (T, T))
    a("v_and_b32 v%d, 7, v%d" % (T + 1, V_LANE))
    a("v_lshrrev_b32 v%d, 4, v%d" % (T + 2, V_LANE))
    a("v_xor_b32 v%d, v%d, v%d" % (T + 3, T + 1, T + 2))
    a("v_xor_b32 v%d, 4, v%d" % (T + 4, T + 3))
    a("v_lshl_add_u32 v%d, v%d, 4, v%d" % (V_DA, T + 3, T))
    a("v_lshl_add_u32 v%d, v%d, 4, v%d" % (T + 4, T + 4, T))
    for i in range(1, 8):
        a("v_add_u32 v%d, 0x%x, v%d" % (V_DA + i, i * 16384 - (i % 4) * 1024, T + 4 if i & 1 else V_DA))
    a("s_lshl_b32 s%d, s%d, 13" % (K1.S_ADW, S_WAVE))


def pro_wdma(a, cfg):
    T = K1.V_T
    magic = {28: 2341, 24: 2731}[cfg.CPR]
    for q in range(64 * cfg.nW):
        assert (q * magic) >> 16 == q // cfg.CPR
    a("s_lshl_b32 s3, s%d, 3" % S_WAVE)
    a("s_movk_i32 s4, %d" % cfg.ldw)
    for i in range(cfg.nW):
        q, kk, c, k, hh, d = T, T + 1, T + 2, T + 3, T + 4, K1.V_DW + i
        if i:
            a("v_add_u32 v%d, %d, v%d" % (q, 64 * i, V_LANE))
        else:
            q = V_LANE
        a("v_mul_u32_u24 v%d, %d, v%d" % (kk, magic, q))
        a("v_lshrrev_b32 v%d, 16, v%d" % (kk, kk))
        a("v_mul_u32_u24 v%d, %d, v%d" % (c, cfg.CPR, kk))
        a("v_sub_u32 v%d, v%d, v%d" % (c, q, c))
        a("v_add_u32 v%d, s3, v%d" % (k, kk))
        if cfg.kind == "ffn":
            a("v_bfe_u32 v%d, v%d, 3, 1" % (hh, k))
            a("v_lshlrev_b32 v%d, 1, v%d" % (hh, hh))
        else:
            a("v_and_b32 v%d, 2, v%d" % (hh, k))
            a("v_bfe_u32 v%d, v%d, 3, 1" % (T + 5, k))
            a("v_lshl_add_u32 v%d, v%d, 2, v%d" % (hh, T + 5, hh))
        a("v_xor_b32 v%d, v%d, v%d" % (c, c, hh))
        if cfg.kind == "ffn":
            a("v_lshlrev_b32 v%d, 4, v%d" % (c, c))
        else:
            a("v_lshrrev_b32 v%d, 3, v%d" % (T + 5, c))
            a("v_lshlrev_b32 v%d, 11, v%d" % (T + 5, T + 5))
            a("v_and_b32 v%d, 7, v%d" % (c, c))
            a("v_lshl_add_u32 v%d, v%d, 4, v%d" % (c, c, T + 5))
        a("v_mad_u32_u24 v%d, v%d, s4, v%d" % (d, k, c))
        if i:
            a("v_subrev_u32 v%d, %d, v%d" % (d, 1024 * i, d))
        if 64 * (i + 1) > 8 * cfg.CPR:
            a("v_mov_b32 v%d, 0x70000000" % (T + 5))
            a("v_cmp_gt_u32 vcc, 8, v%d" % kk)
            a("s_nop 1")
            a("v_cndmask_b32 v%d, v%d, v%d, vcc" % (d, T + 5, d))
    a("s_mul_i32 s%d, s%d, %d" % (K1.S_WDW, S_WAVE, cfg.GS))
    a("s_add_u32 s%d, s%d, 0x%x" % (K1.S_WDW, K1.S_WDW, cfg.WREG))


def pro_srds(a, cfg):
    a("s_lshl_b32 s3, s%d, 19" % S_MT)
    a("s_add_u32 s%d, s%d, s3" % (SRD_A, K1.S_X))
    a("s_addc_u32 s%d, s%d, 0" % (SRD_A + 1, K1.S_X + 1))
    a("s_and_b32 s%d, s%d, 0xffff" % (SRD_A + 1, SRD_A + 1))
    a("s_mov_b32 s%d, 0x80000" % (SRD_A + 2))
    a("s_mov_b32 s%d, 0x20000" % (SRD_A + 3))
    if cfg.kind == "ffn":
        wp, colb, tot = K1.S_W1, 448, 1024 * 7168
    else:
        wp, colb, tot = K1.S_WQKV, 128, 1024 * 6144
    a("s_mul_i32 s3, s%d, %d" % (K1.S_NT, colb))
    a("s_add_u32 s%d, s%d, s3" % (SRD_W, wp))
    a("s_addc_u32 s%d, s%d, 0" % (SRD_W + 1, wp + 1))
    a("s_and_b32 s%d, s%d, 0xffff" % (SRD_W + 1, SRD_W + 1))
    a("s_sub_u32 s%d, %d, s3" % (SRD_W + 2, tot))
    a("s_mov_b32 s%d, 0x20000" % (SRD_W + 3))


def pro_reads(a, cfg):
    T = K1.V_T
    m, g, f = T, T + 1, T + 2
    a("v_and_b32 v%d, 15, v%d" % (m, V_LANE))
    a("v_lshrrev_b32 v%d, 4, v%d" % (g, V_LANE))
    a("v_lshrrev_b32 v%d, 1, v%d" % (f, m))
    a("v_xor_b32 v%d, v%d, v%d" % (f, f, g))
    a("s_lshl_b32 s3, s%d, 14" % K1.S_WR)
    a("v_lshlrev_b32 v%d, 7, v%d" % (T + 3, m))
    a("v_add_u32 v%d, s3, v%d" % (T + 3, T + 3))
    a("v_lshl_add_u32 v%d, v%d, 4, v%d" % (V_AL, f, T + 3))
    a("v_xor_b32 v%d, 64, v%d" % (V_AL + 1, V_AL))
    r, cc, hh, b = T + 2, T + 3, T + 4, T + 5
    a("v_bfe_u32 v%d, v%d, 2, 2" % (r, V_LANE))
    a("v_and_b32 v%d, 3, v%d" % (cc, V_LANE))
    a("v_and_b32 v%d, 1, v%d" % (hh, g))
    if cfg.kind == "ffn":
        a("s_lshl_b32 s3, s%d, 3" % K1.S_WC)
    else:
        a("v_lshlrev_b32 v%d, 1, v%d" % (hh, hh))
        a("v_lshrrev_b32 v%d, 1, v%d" % (b, r))
        a("v_or_b32 v%d, v%d, v%d" % (hh, hh, b))
        a("s_lshl_b32 s3, s%d, 1" % K1.S_WC)
    a("v_mul_u32_u24 v%d, %d, v%d" % (b, cfg.GS, g))
    a("v_mul_u32_u24 v%d, %d, v%d" % (r, cfg.RB, r))
    a("v_add_u32 v%d, v%d, v%d" % (b, b, r))
    a("v_lshl_add_u32 v%d, v%d, 3, v%d" % (b, cc, b))
    a("v_add_u32 v%d, 0x%x, v%d" % (b, cfg.WREG, b))
    for p in range(2):
        if p:
            a("s_add_u32 s3, s3, 1")
        a("v_xor_b32 v%d, s3, v%d" % (r, hh))
        a("v_lshl_add_u32 v%d, v%d, 5, v%d" % (V_W + p, r, b))
    if cfg.kind == "ffn":
        a("s_add_u32 s3, s%d, 6" % K1.S_WC)
        a("v_xor_b32 v%d, s3, v%d" % (r, hh))
        a("v_lshl_add_u32 v%d, v%d, 5, v%d" % (V_W3, r, b))
    else:
        a("s_lshl_b32 s3, s%d, 4" % K1.S_NT)
        a("s_lshl_b32 s4, s%d, 2" % S_WAVE)
        a("s_add_u32 s3, s3, s4")
        a("v_add_u32 v%d, s3, v%d" % (r, g))
        a("v_lshlrev_b32 v%d, 7, v%d" % (V_GL, r))
        a("v_lshl_add_u32 v%d, v%d, 3, v%d" % (V_GL, m, V_GL))
        a("v_and_b32 v%d, 14, v%d" % (r, r))
        a("v_xor_b32 v%d, v%d, v%d" % (r, r, m))
        a("v_lshlrev_b32 v%d, 3, v%d" % (r, r))
        a("v_add_u32 v%d, 0x%x, v%d" % (V_GG, cfg.LDS, r))
        a("v_mov_b32 v%d, 0" % V_GS)


def gate_items():
    ex = {0: [], 1: [], 2: [], 3: []}
    for h in range(2):
        ex[2 * h].append((9, ("s", "v_add_u32 v%d, s%d, v%d" % (V_GA, K1.S_SL, V_GL))))
        ex[2 * h].append((27, ("ds", "ds_read_b64 %s, v%d" % (vr(V_GX, 2), V_GA))))
        ex[2 * h].append((28, ("ds", "ds_read_b64 %s, v%d offset:%d" % (vr(V_GW, 2), V_GG, 128 * h))))
        t = V_GT
        ops = []
        for i in range(2):
            ops.append("v_lshlrev_b32 v%d, 16, v%d" % (t + 2 * i, V_GX + i))
            ops.append("v_and_b32 v%d, 0xffff0000, v%d" % (t + 2 * i + 1, V_GX + i))
            ops.append("v_lshlrev_b32 v%d, 16, v%d" % (t + 4 + i, V_GW + i))
            ops.append("v_and_b32 v%d, 0xffff0000, v%d" % (V_GW + i, V_GW + i))
        for i in range(2):
            ops.append("v_mul_f32 v%d, v%d, v%d" % (t + 2 * i, t + 2 * i, t + 4 + i))
            ops.append("v_mul_f32 v%d, v%d, v%d" % (t + 2 * i + 1, t + 2 * i + 1, V_GW + i))
        for i in range(2):
            ops.append("v_cvt_pk_bf16_f32 v%d, v%d, v%d" % (t + 2 * i, t + 2 * i, t + 2 * i + 1))
        for i in range(2):
            ops.append("v_lshlrev_b32 v%d, 16, v%d" % (t + 2 * i + 1, t + 2 * i))
            ops.append("v_and_b32 v%d, 0xffff0000, v%d" % (t + 2 * i, t + 2 * i))
        ops.append("v_add_f32 v%d, v%d, v%d" % (t, t, t + 1))
        ops.append("v_add_f32 v%d, v%d, v%d" % (t + 2, t + 2, t + 3))
        ops.append("v_add_f32 v%d, v%d, v%d" % (V_GS, V_GS, t))
        ops.append("v_add_f32 v%d, v%d, v%d" % (V_GS, V_GS, t + 2))
        if h == 1:
            ops.append("v_add_u32 v%d, 0x100, v%d" % (V_GG, V_GG))
        pos = [10, 12, 14, 18, 20, 22, 26, 27, 28, 29, 30, 31, 34, 35, 36, 37, 38, 39, 42, 43, 44, 45, 46]
        for o, p_ in zip(ops, pos):
            ex[2 * h + 1].append((p_, ("s", o)))
        assert len(ops) <= len(pos)
    return ex


def gate_final(a):
    R, t = V_GS, V_GT
    for sh in (8, 4, 2, 1):
        a("s_nop 1")
        a("v_add_f32_dpp v%d, v%d, v%d row_ror:%d row_mask:0xf bank_mask:0xf" % (R, R, R, sh))
    a("v_cvt_pk_bf16_f32 v%d, v%d, v%d" % (R, R, R))
    a("v_and_b32 v%d, 0xffff0000, v%d" % (R, R))
    a("v_mul_f32 v%d, 0xbfb8aa3b, v%d" % (R, R))
    a("v_exp_f32 v%d, v%d" % (R, R))
    a("s_lshl_b32 s4, s%d, 10" % S_MT)
    a("v_add_f32 v%d, 1.0, v%d" % (R, R))
    a("v_rcp_f32 v%d, v%d" % (R, R))
    a("s_lshl_b32 s5, s%d, 6" % K1.S_NT)
    a("v_cvt_pk_bf16_f32 v%d, v%d, v%d" % (R, R, R))
    a("v_and_b32 v%d, 0xffff0000, v%d" % (R, R))
    a("v_sub_f32 v%d, 1.0, v%d" % (t + 1, R))
    a("v_cvt_pk_bf16_f32 v%d, v%d, v%d" % (t + 1, t + 1, t + 1))
    a("v_and_b32 v%d, 0xffff0000, v%d" % (t + 1, t + 1))
    a("v_lshrrev_b32 v%d, 6, v%d" % (t, V_L16))
    a("s_add_u32 s4, s4, s5")
    a("s_lshl_b32 s5, s%d, 4" % S_WAVE)
    a("s_add_u32 s4, s4, s5")
    a("s_add_u32 s4, s4, 0x%x" % WS_G)
    a("s_add_u32 s5, s4, 0x2000")
    a("s_mov_b32 exec_lo, 0x00010001")
    a("s_mov_b32 exec_hi, 0x00010001")
    a("buffer_store_dword v%d, v%d, s[%d:%d], s4 offen sc1" % (R, t, SRD_O, SRD_O + 3))
    a("buffer_store_dword v%d, v%d, s[%d:%d], s5 offen sc1" % (t + 1, t, SRD_O, SRD_O + 3))
    a("s_mov_b64 exec, -1")


def g1_main(a, tail, cfg, name):
    g = K1.G1Gen(cfg)
    cfg.verify()
    RA = cfg.RA
    ffn = cfg.kind == "ffn"
    pro_wdma(a, cfg)
    first = min(-2 * RA + 1, -4)
    s0 = first // 2
    base = s0 - 1 if first % 2 == 0 else s0
    for q in range(RA):
        a("s_mov_b32 s%d, 0x%x" % (K1.S_SL + q, ((base + q) % RA) * 32768))
    a("s_mov_b32 s%d, 0x%x" % (K1.S_OFFW, ((first - 1 + 4) * 32 * cfg.ldw) & 0xffffffff))
    fs1 = first if first % 2 == 1 else first + 1
    a("s_mov_b32 s%d, 0x%x" % (K1.S_KA, ((fs1 // 2 + RA - 1) * 128) & 0xffffffff))
    a("s_mov_b32 s%d, 0" % K1.S_OFFA)
    if ffn:
        a("v_mov_b64 v[0:1], 0")
        a("v_mov_b64 v[2:3], 0")
        a("s_sub_u32 s12, s2, 128")
        a("s_lshl_b32 s13, s%d, 8" % S_WAVE)
        a("s_add_u32 s13, s13, s12")
        a("s_cmp_lt_u32 s13, %d" % NZ)
        a("s_cselect_b32 s14, 0xffff, 0")
        a("s_mov_b32 s15, 0")
        a("s_lshl_b32 s13, s12, 11")
        a("s_add_u32 s13, s13, 0x%x" % WS_FL)
        a("v_lshlrev_b32 v4, 7, v%d" % V_LANE)
    a("s_waitcnt lgkmcnt(0)")
    pro_srds(a, cfg)
    srd_ws(a, SRD_O)
    if ffn:
        a("s_mov_b64 exec, s[14:15]")
        a("buffer_store_dwordx4 v[0:3], v4, s[%d:%d], s13 offen sc1" % (SRD_O, SRD_O + 3))
        a("s_mov_b64 exec, -1")
    for j in range(first, -3):
        g.step(a, j, mfma=False, reads=False)
    if not ffn:
        a("s_mov_b32 s8, s%d" % S_GATE)
        a("s_and_b32 s9, s%d, 0xffff" % (S_GATE + 1))
        a("s_movk_i32 s10, 2048")
        a("s_mov_b32 s11, 0x20000")
        a("s_lshl_b32 s3, s%d, 10" % K1.S_WC)
        a("s_add_u32 m0, s3, 0x%x" % cfg.LDS)
        a("s_nop 0")
        a("buffer_load_dwordx4 v%d, s[8:11], s3 offen lds" % V_L16)
        g.vm.issue(("W", 0))
    pro_reads(a, cfg)
    pf_setup(a, name)
    a("s_mov_b32 s%d, s%d" % (SRD_D, S_DBG))
    a("s_and_b32 s%d, s%d, 0xffff" % (SRD_D + 1, S_DBG + 1))
    a("s_movk_i32 s%d, 256" % (SRD_D + 2))
    a("s_mov_b32 s%d, 0x20000" % (SRD_D + 3))
    for i in range(0, cfg.MU * cfg.NU * 4, 2):
        a("v_mov_b64 v[%d:%d], 0" % (i, i + 1))
    for j in range(-3, -1):
        g.step(a, j, mfma=False, reads=False)
    g.step(a, -1, mfma=False, reads=True)
    if ffn:
        a("v_mov_b32 v%d, 1" % V_HS)
        a("s_lshl_b32 s12, s12, 2")
        a("s_and_b32 exec_lo, s14, 1")
        a("s_mov_b32 exec_hi, 0")
        a("buffer_store_dword v%d, v%d, s[%d:%d], s12 offen sc1" % (V_HS, V_L16, SRD_D, SRD_D + 3))
        a("s_mov_b64 exec, -1")
    stamp(a)
    a("s_mov_b32 s%d, %d" % (K1.S_CNT, cfg.NS // 2))
    pf = [(6, ("dma", ([], pf_ins(), ("P", 0)))), (7, ("s", "s_add_u32 s%d, s%d, s%d" % (S_POFF, S_POFF, S_PINC))),
          (7, ("s", "s_cmp_eq_u32 s%d, s90" % S_POFF)), (7, ("s", "s_cselect_b32 s%d, 0x80000000, s%d" % (S_POFF, S_POFF)))]
    ex = {0: [], 1: [], 2: [], 3: []} if ffn else gate_items()
    ex[0] += pf
    ex[2] += pf
    g.extra4 = ex
    bodies = []
    for it in range(3):
        b = Asm()
        for j in range(4 * it, 4 * it + 4):
            g.step(b, j)
        bodies.append(b.text())
    assert bodies[1] == bodies[2], "loop body not periodic"
    if bodies[0] != bodies[1]:
        l0, l1 = bodies[0].split("\n"), bodies[1].split("\n")
        assert len(l0) == len(l1)
        for i in range(len(l0)):
            if l0[i] != l1[i]:
                m0, m1 = [re.match(r"\s*s_waitcnt vmcnt\((\d+)\)(.*)", x) for x in (l0[i], l1[i])]
                assert m0 and m1 and m0.group(2) == m1.group(2), (l0[i], l1[i])
                if int(m1.group(1)) < int(m0.group(1)):
                    l0[i] = l1[i]
        bodies[0] = "\n".join(l0)
    a.raw(".p2align 6")
    a.label("L_%s_loop" % name)
    a("s_cmp_eq_u32 s%d, 2" % K1.S_CNT)
    a("s_cbranch_scc1 L_%s_hs" % name)
    a.label("L_%s_hsr" % name)
    a.raw(bodies[0].rstrip("\n"))
    K1.stamp_iter(a, 8)
    a("s_sub_u32 s%d, s%d, 1" % (K1.S_CNT, K1.S_CNT))
    a("s_cmp_lg_u32 s%d, 0" % K1.S_CNT)
    a("s_cbranch_scc1 L_%s_loop" % name)
    tail.label("L_%s_hs" % name)
    tail("v_lshrrev_b32 v%d, 2, v%d" % (V_PA, V_L16))
    tail("v_and_b32 v%d, %d, v%d" % (V_PV, 4 * NZ - 4, V_PA))
    tail("buffer_load_dword v%d, v%d, s[%d:%d], 0 offen sc1" % (V_HS, V_PV, SRD_D, SRD_D + 3))
    tail("s_branch L_%s_hsr" % name)
    stamp(a)
    spin_check(a, "hs" + name, V_PV, V_HS, SRD_D, "0", None)
    a("s_lshl_b32 s%d, s%d, 12" % (S_FM, S_MT))
    a("s_add_u32 s%d, s%d, 0x%x" % (S_FM, S_FM, WS_FL))
    a("s_lshl_b32 s4, s%d, 8" % K1.S_NT)
    a("s_add_u32 s%d, s%d, s4" % (S_FO, S_FM))
    a("s_cmp_eq_u32 s%d, 0" % S_MT)
    a("s_cselect_b32 s3, 0, 0x1000")
    a("s_sub_u32 s12, s%d, s3" % S_FO)
    if ffn:
        a("v_and_b32 v%d, 1, v%d" % (V_PA, V_LANE))
        a("v_mul_u32_u24 v%d, s3, v%d" % (V_PA, V_PA))
        a("s_add_u32 s%d, s%d, 128" % (S_FO, S_FO))
    else:
        a("v_mov_b32 v%d, 0" % V_PA)


def poll1(a):
    a("buffer_load_dword v%d, v%d, s[%d:%d], s12 offen sc1" % (V_PV, V_PA, SRD_O, SRD_O + 3))


def kv_loads(a, kind):
    T = V_T
    a("s_mov_b32 s%d, %d" % (S_KIND, kind))
    a("s_lshl_b32 s3, s%d, 1" % K1.S_NT)
    a("s_add_u32 s%d, s3, %d" % (S_HEAD, kind))
    a("s_lshr_b32 s%d, s%d, 3" % (S_KS, S_HEAD))
    a("s_and_b32 s%d, s%d, 7" % (S_NT, S_HEAD))
    a("s_lshl_b32 s3, s%d, 17" % S_HEAD)
    a("s_lshl_b32 s4, s%d, 14" % S_MT)
    a("s_add_u32 s3, s3, s4")
    a("s_lshl_b32 s5, s%d, 13" % S_WAVE)
    a("s_add_u32 s4, s4, s5")
    a("s_cmp_lt_u32 s4, 0x4000")
    a("s_cselect_b32 s4, 0, 0x4000")
    a("s_add_u32 s6, s3, s5")
    a("s_sub_u32 s6, s6, s4")
    a("s_add_u32 s6, s6, 0x%x" % WS_K)
    a("s_lshl_b32 s%d, s%d, 12" % (S_W4K, S_WAVE))
    a("s_add_u32 s7, s3, s%d" % S_W4K)
    local = kind == 0 and P["LOCAL"]
    if local:
        a("s_cmp_lt_u32 s%d, 2" % S_WAVE)
        a("s_cselect_b64 s[90:91], -1, 0")
        a("s_cbranch_scc0 L_nokv")
    else:
        a("s_mov_b64 s[90:91], -1")
    for kv in range(2):
        for h in range(2):
            for i in range(4):
                a("buffer_load_dwordx4 %s, v%d, s[%d:%d], s6 offen offset:%d sc1" % (
                    ar(A_KV + 32 * kv + 16 * h + 4 * i, 4), V_L16, SRD_O, SRD_O + 3, 1024 * i))
            a("s_add_u32 s6, s6, 0x%x" % (0x1000 if h == 0 else WS_V - WS_K - 0x1000))
        if kv == 0 and not local:
            for q in range(4):
                a("buffer_load_dwordx4 %s, v%d, s[%d:%d], s7 offen offset:%d sc1" % (
                    ar(A_Q + 4 * q, 4), V_L16, SRD_O, SRD_O + 3, 1024 * q))
    if local:
        a.label("L_nokv")
    a("v_lshlrev_b32 v%d, 4, v%d" % (V_G, V_L16))
    a("v_and_b32 v%d, 0xf00, v%d" % (V_G, V_G))
    a("buffer_load_dword v%d, v%d, s[%d:%d], s%d offen sc1" % (V_G + 1, V_G, SRD_O, SRD_O + 3, S_FM))


def epi_qkv(a, cfg):
    S_T3 = K1.S_T3
    T = V_T
    local = P["LOCAL"]
    a("s_lshl_b32 s%d, s%d, 1" % (S_TMP, K1.S_NT))
    a("s_add_u32 s%d, s%d, s%d" % (S_TMP, S_TMP, K1.S_WC))
    a("s_lshl_b32 s%d, s%d, 17" % (S_TMP, S_TMP))
    a("s_lshl_b32 s3, s%d, 14" % S_MT)
    a("s_add_u32 s%d, s%d, s3" % (S_TMP, S_TMP))
    a("s_lshl_b32 s3, s%d, 13" % K1.S_WR)
    a("s_add_u32 s%d, s%d, s3" % (S_TMP, S_TMP))
    a("s_mov_b32 s%d, 0x%x" % (S_T3, K1.QSCALE))
    if local:
        a("s_add_u32 s3, s3, 0x%x" % (KV + 16384))
        a("v_add_u32 v%d, s3, v%d" % (T, V_L16))
        a("s_lshl_b32 s3, s%d, 12" % K1.S_WR)
        a("s_add_u32 s3, s3, 0x%x" % XL)
        a("v_add_u32 v%d, s3, v%d" % (T + 1, V_L16))
        a("s_lshl_b32 s3, s%d, 11" % S_WAVE)
        a("s_add_u32 s3, s3, 0x%x" % XL)
        a("v_add_u32 v%d, s3, v%d" % (T + 3, V_L16))
        a("s_cmp_eq_u32 s%d, 0" % K1.S_WC)
        a("s_cselect_b64 s[14:15], -1, 0")
        a("s_cselect_b32 s13, 0x80000000, s%d" % S_TMP)
    first = True
    for which, base in ((1, WS_K), (2, WS_V), (0, WS_Q)):
        regs = []
        for u in range(8):
            if which == 2:
                p, dt = u // 2, u % 2
                r0, r1 = K1.acc(cfg, 4 + dt, 2 * p), K1.acc(cfg, 4 + dt, 2 * p + 1)
            else:
                r0, r1 = K1.acc(cfg, 2 * which, u), K1.acc(cfg, 2 * which + 1, u)
            if which == 0:
                for r in (r0, r1):
                    for i in range(4):
                        a("v_mul_f32 v%d, s%d, v%d" % (r + i, S_T3, r + i))
            K1.pack_pair(a, r0, r1, False)
            if u % 4 == 0:
                a("s_add_u32 s3, s%d, 0x%x" % (13 if (local and which == 0) else S_TMP, base + u * 1024))
            a("buffer_store_dwordx4 %s, v%d, s[%d:%d], s3 offen offset:%d sc1" % (
                vr(r0, 4), V_L16, SRD_O, SRD_O + 3, (u % 4) * 1024))
            regs.append(r0)
        if local:
            if first:
                a("s_waitcnt vmcnt(8) lgkmcnt(0)")
                a("s_barrier")
                first = False
            a("s_mov_b64 exec, s[14:15]")
            for u in range(8):
                if which == 0:
                    a("ds_write_b128 v%d, %s offset:%d" % (T + 1, vr(regs[u], 4), (u >> 2) * 2048 + ((u >> 1) & 1) * 8192 + (u & 1) * 1024))
                else:
                    a("ds_write_b128 v%d, %s offset:%d" % (T, vr(regs[u], 4), (which - 1) * 32768 + u * 1024))
            a("s_mov_b64 exec, -1")
        if which == 1:
            gate_final(a)
    a("s_mov_b32 s%d, 0x80000000" % S_H2)
    a("s_mov_b32 s%d, 0x80000000" % S_H4)
    a("s_waitcnt vmcnt(0) lgkmcnt(0)")
    a("s_barrier")
    flag_store(a, "q", S_FO, 0)
    poll1(a)
    if local:
        for i in range(4):
            a("ds_read_b128 %s, v%d offset:%d" % (ar(A_Q + 4 * i, 4), T + 3, (i >> 1) * 8192 + (i & 1) * 1024))
    stamp(a)
    spin_check(a, "qq", V_PA, V_PV, SRD_O, "s12", "s_waitcnt vmcnt(0)")
    stamp(a)
    kv_loads(a, 0)
    setup2(a)
    a("s_waitcnt vmcnt(0)")
    a("s_branch L_post")


def h_store(i):
    p, u = i // 8, i % 8
    pre = ["s_add_u32 s92, s%d, 0x%x" % (S_H4, p * 16384 + u * 1024)] if u % 4 == 0 else []
    return (pre, "buffer_store_dwordx4 %s, v%d, s[%d:%d], s92 offen offset:%d sc1" % (
        ar(A_HS + 4 * i, 4), V_L16, SRD_O, SRD_O + 3, (u % 4) * 1024), ("H", -1))


def epi_ffn(a, cfg):
    T = V_T
    poll1(a)
    a("s_mul_i32 s%d, s%d, 144" % (S_TMP, S_MT))
    a("s_mul_i32 s3, s%d, 7" % K1.S_NT)
    a("s_add_u32 s%d, s%d, s3" % (S_TMP, S_TMP))
    a("s_add_u32 s%d, s%d, 32" % (S_TMP, S_TMP))
    a("s_lshl_b32 s%d, s%d, 14" % (S_TMP, S_TMP))
    a("s_lshl_b32 s3, s%d, 13" % K1.S_WR)
    a("s_add_u32 s%d, s%d, s3" % (S_TMP, S_TMP))
    a("s_add_u32 s%d, s%d, 0x%x" % (S_TMP, S_TMP, WS_ACT))
    a("s_lshl_b32 s3, s%d, 16" % K1.S_WC)
    a("s_add_u32 s%d, s%d, s3" % (S_H4, S_TMP))
    a("s_lshl_b32 s3, s%d, 12" % K1.S_WC)
    a("s_add_u32 s%d, s%d, s3" % (S_H2, S_TMP))
    a("s_add_u32 s%d, s%d, 0xc000" % (S_H2, S_H2))
    a("s_lshl_b32 s3, s%d, 12" % K1.S_WR)
    a("s_lshl_b32 s4, s%d, 3" % K1.S_WC)
    a("s_add_u32 s3, s3, s4")
    a("s_add_u32 s3, s3, 0x%x" % XL)
    a("v_add_u32 v%d, s3, v%d" % (T, V_L16))
    for u in range(8):
        r0 = K1.acc(cfg, 6, u)
        a("v_cvt_pk_bf16_f32 v%d, v%d, v%d" % (r0, r0, r0 + 1))
        a("v_cvt_pk_bf16_f32 v%d, v%d, v%d" % (r0 + 1, r0 + 2, r0 + 3))
        a("v_pk_max_i16 v%d, v%d, 0" % (r0, r0))
        a("v_pk_max_i16 v%d, v%d, 0" % (r0 + 1, r0 + 1))
    a("s_waitcnt vmcnt(1) lgkmcnt(0)")
    a("s_barrier")
    for u in range(8):
        a("ds_write_b64 v%d, %s offset:%d" % (T, vr(K1.acc(cfg, 6, u), 2), (u >> 2) * 2048 + ((u >> 1) & 1) * 8192 + (u & 1) * 1024))

    def cvt(p):
        for u in range(8):
            r0, r1 = K1.acc(cfg, 2 * p, u), K1.acc(cfg, 2 * p + 1, u)
            K1.pack_pair(a, r0, r1, True)
            for i in range(4):
                a("v_accvgpr_write_b32 a%d, v%d" % (A_HS + (p * 8 + u) * 4 + i, r0 + i))
    for p in range(P["CVT0"]):
        cvt(p)
    stamp(a)
    spin_check(a, "qf", V_PA, V_PV, SRD_O, "s12", "s_waitcnt vmcnt(0)")
    stamp(a)
    kv_loads(a, 1)
    for p in range(P["CVT0"], 3):
        cvt(p)
    for i in range(P["NS0"]):
        pre, ins, _ = h_store(i)
        for x in pre:
            a(x)
        a(ins)
    setup2(a)
    a("s_waitcnt vmcnt(%d)" % P["NS0"])


def setup2(a):
    T = V_T
    a("v_lshrrev_b32 v0, 4, v%d" % V_L16)
    a("v_and_b32 v%d, 15, v0" % (T + 1))
    a("v_lshrrev_b32 v%d, 4, v0" % T)
    a("s_lshl_b32 s3, s%d, 14" % S_WAVE)
    a("v_lshlrev_b32 v%d, 1, v%d" % (T + 2, T))
    a("v_xor_b32 v%d, v%d, v%d" % (T + 2, T + 2, T + 1))
    a("v_lshlrev_b32 v%d, 11, v%d" % (T + 3, T))
    a("v_add_u32 v%d, s3, v%d" % (T + 3, T + 3))
    a("v_lshl_add_u32 v%d, v%d, 4, v%d" % (V_DW, T + 2, T + 3))
    a("v_xor_b32 v%d, 0x80, v%d" % (V_DW + 1, V_DW))
    a("v_add_u32 v%d, 0x%x, v%d" % (V_DW + 1, 4 * 2048 - 1024, V_DW + 1))
    a("s_lshl_b32 s%d, s%d, 11" % (S_WDW, S_WAVE))
    a("v_lshlrev_b32 v%d, 2, v%d" % (T, T))
    a("v_sub_u32 v%d, v%d, v%d" % (T, T + 1, T))
    for i in range(4):
        a("v_cmp_lt_i32 %s, v%d, %d" % (sr(S_MSK + 2 * i, 2), T, i))
    a("s_mul_i32 s5, s%d, %d" % (S_KS, NH))
    a("s_add_u32 s6, s5, 32")
    a("s_lshl_b32 s%d, s6, 14" % S_ABEG)
    a("s_add_u32 s%d, s%d, s%d" % (S_ABEG, S_ABEG, S_W4K))
    a("s_add_u32 s%d, s%d, 0x%x" % (S_AEND, S_ABEG, NH << 14))
    a("s_lshl_b32 s%d, s5, 16" % S_WBEG)
    a("s_add_u32 s%d, s%d, 0x%x" % (S_WEND, S_WBEG, NH << 16))
    a("s_mul_i32 s5, s%d, 7" % S_NT)
    a("s_lshr_b32 s5, s5, 1")
    a("s_and_b32 s6, s%d, 3" % S_MT)
    a("s_mul_i32 s6, s6, 7")
    a("s_add_u32 s5, s5, s6")
    a("s_cmp_ge_u32 s5, %d" % NH)
    a("s_cselect_b32 s6, %d, 0" % NH)
    a("s_sub_u32 s5, s5, s6")
    a("s_lshl_b32 s6, s5, 14")
    a("s_add_u32 s%d, s%d, s6" % (S_OFFA, S_ABEG))
    a("s_lshl_b32 s6, s5, 16")
    a("s_add_u32 s%d, s%d, s6" % (S_OFFW, S_WBEG))
    a("s_mul_i32 s7, s%d, 0x%x" % (S_MT, 144 * 16384))
    a("s_add_u32 s7, s7, 0x%x" % WS_ACT)
    a("s_lshl_b32 s%d, s%d, 8" % (S_COL, S_NT))
    a("s_add_u32 s%d, s%d, s%d" % (SRD_W, S_W2, S_COL))
    a("s_addc_u32 s%d, s%d, 0" % (SRD_W + 1, S_W2 + 1))
    a("s_and_b32 s%d, s%d, 0xffff" % (SRD_W + 1, SRD_W + 1))
    a("s_sub_u32 s%d, 0x700000, s%d" % (SRD_W + 2, S_COL))
    a("s_mov_b32 s%d, 0x20000" % (SRD_W + 3))
    a("s_add_u32 s%d, s%d, s7" % (SRD_A, S_WS))
    a("s_addc_u32 s%d, s%d, 0" % (SRD_A + 1, S_WS + 1))
    a("s_and_b32 s%d, s%d, 0xffff" % (SRD_A + 1, SRD_A + 1))
    a("s_mov_b32 s%d, 0x%x" % (SRD_A + 2, 144 * 16384))
    a("s_mov_b32 s%d, 0x20000" % (SRD_A + 3))
    a("v_bfe_u32 v%d, v0, 2, 4" % (T + 2))
    a("v_and_b32 v%d, 7, v%d" % (T + 3, T + 2))
    a("v_lshlrev_b32 v%d, 8, v%d" % (T + 2, T + 2))
    a("v_lshl_add_u32 v%d, v%d, 5, v%d" % (T + 2, T + 3, T + 2))
    a("v_and_b32 v%d, 3, v0" % (T + 3))
    a("v_lshl_add_u32 v%d, v%d, 3, v%d" % (T + 2, T + 3, T + 2))
    a("s_lshl_b32 s3, s%d, 6" % S_KS)
    for t in range(8):
        if t:
            a("s_add_u32 s3, s3, 32")
            a("s_and_b32 s3, s3, 0xff")
        a("v_xor_b32 v%d, s3, v%d" % (V_RB + t, T + 2))
        a("v_add_u32 v%d, 0x10000, v%d" % (V_RB + 8 + t, V_RB + t))
    a("v_mov_b32 v%d, 0x%x" % (V_BIG, BIG))
    for i in range(4):
        a("v_mov_b32 v%d, 0x3f803f80" % (V_ONE + i))
    a("s_add_u32 s3, s%d, 0x%x" % (S_W4K, KV))
    a("v_add_u32 v%d, s3, v%d" % (V_RD, V_L16))
    a("v_add_u32 v%d, s%d, v%d" % (T, S_W4K, V_RD))
    a("s_add_u32 s3, s%d, 0x%x" % (S_WDW, XL))
    a("v_add_u32 v%d, s3, v%d" % (T + 3, V_L16))
    a("s_lshl_b32 s3, s%d, 3" % S_MT)
    a("s_lshl_b32 s4, s%d, 1" % S_WAVE)
    a("s_add_u32 s3, s3, s4")
    a("s_sub_i32 s%d, 8, s3" % S_T2)
    a("s_max_i32 s%d, s%d, 0" % (S_T0, S_T2))
    a("s_lshl_b32 s3, s%d, 14" % S_HEAD)
    a("s_add_u32 s3, s3, s%d" % S_W4K)
    a("s_add_u32 s%d, s3, s7" % S_TMP)
    a("s_lshl_b32 s3, s%d, 10" % S_KS)
    a("s_add_u32 s93, s3, s%d" % S_FM)
    a("v_lshlrev_b32 v%d, 8, v0" % (T + 1))
    a("v_and_b32 v%d, 0x300, v%d" % (T + 1, T + 1))
    a("v_add_u32 v%d, 0x80, v%d" % (T + 1, T + 1))
    a("v_lshlrev_b32 v%d, 2, v0" % (T + 2))
    a("v_and_b32 v%d, 60, v%d" % (T + 2, T + 2))


def second_half(a, fix, R, L, BP, POLL, PUB, HP):
    g = K2.G2(R, L, BP)
    T = V_T
    NIT = NSTEP // R
    a.label("L_post")
    for i in range(P["NS0"]):
        g.vm.issue(("H", -1))
    a("s_mov_b64 exec, s[90:91]")
    for kv in range(2):
        for i in range(8):
            a("ds_write_b128 v%d, %s offset:%d" % (T, ar(A_KV + 32 * kv + 4 * i, 4), 32768 * kv + 1024 * i))
    a("s_mov_b64 exec, -1")
    spin_check(a, "g", V_G, V_G + 1, SRD_O, "s%d" % S_FM, None)
    a("s_lshl_b32 s4, s%d, 8" % S_WAVE)
    a("s_lshl_b32 s3, s%d, 10" % S_MT)
    a("s_add_u32 s3, s3, s4")
    a("s_add_u32 s3, s3, 0x%x" % WS_G)
    a("s_add_u32 s4, s3, 0x2000")
    for u in range(4):
        g.emit(a, ([], "buffer_load_dword v%d, v%d, s[%d:%d], s3 offen offset:%d sc1" % (V_G + u, T + 2, SRD_O, SRD_O + 3, 64 * u), ("H", -1)))
    for u in range(4):
        g.emit(a, ([], "buffer_load_dword v%d, v%d, s[%d:%d], s4 offen offset:%d sc1" % (V_OMG + u, T + 2, SRD_O, SRD_O + 3, 64 * u), ("H", -1)))
    a("s_waitcnt lgkmcnt(0)")
    a("s_barrier")
    for i in range(4):
        a("ds_read_b128 %s, v%d offset:%d" % (ar(A_H + 4 * i, 4), T + 3, (i >> 1) * 8192 + (i & 1) * 1024))
    stamp(a)
    wi, ai = [], []
    for s in range(R):
        ld = g.loads(s)

        def fw(ld=ld, s=s):
            g.emit(a, ld[0])
            g.emit(a, ld[1])
            if s < R - 1:
                a("s_add_u32 s%d, s%d, 0x10000" % (S_OFFW, S_OFFW))
                a("s_cmp_eq_u32 s%d, s%d" % (S_OFFW, S_WEND))
                a("s_cselect_b32 s%d, s%d, s%d" % (S_OFFW, S_WBEG, S_OFFW))
        wi.append(fw)
        for i in (2, 4):
            def fa(ld=ld, i=i, s=s):
                g.emit(a, ld[i])
                g.emit(a, ld[i + 1])
                if i == 4 and s < R - 1:
                    a("s_add_u32 s%d, s%d, 0x4000" % (S_OFFA, S_OFFA))
                    a("s_cmp_eq_u32 s%d, s%d" % (S_OFFA, S_AEND))
                    a("s_cselect_b32 s%d, s%d, s%d" % (S_OFFA, S_ABEG, S_OFFA))
            ai.append(fa)

    def late(h):
        for i in (2 * h, 2 * h + 1):
            g.emit(a, ([], "buffer_store_dwordx4 %s, v%d, s[%d:%d], s%d offen offset:%d sc1" % (
                ar(A_H + 4 * i, 4), V_L16, SRD_O, SRD_O + 3, S_H2, 1024 * i), ("H", -1)))

    def pub():
        a(waitcnt(g.vm.need(lambda tg: tg[0] == "H"), None))
        a("s_barrier")
        a("s_cmp_eq_u32 s%d, 0" % S_KIND)
        a("s_cbranch_scc1 L_nf_f")
        flag_store(a, "f", S_FO, T + 3)

    def wo_pf():
        a("s_lshl_b32 s3, s2, 13")
        a("s_add_u32 s3, s3, s%d" % S_WDW)
        a("s_mov_b32 s88, s%d" % S_WO)
        a("s_and_b32 s89, s%d, 0xffff" % (S_WO + 1))
        a("s_mov_b32 s90, 0x200000")
        a("s_mov_b32 s91, 0x20000")
        a("v_lshlrev_b32 v%d, 1, v%d" % (T + 2, V_L16))
        g.emit(a, ([], "buffer_load_dword v%d, v%d, s[88:91], s3 offen" % (T + 2, T + 2), ("P0", -1)))

    def hp_issue():
        g.emit(a, ([], "buffer_load_dword v%d, v%d, s[%d:%d], s93 offen sc1" % (T + 2, T + 1, SRD_O, SRD_O + 3), ("P", -1)))

    def hp_check():
        spin_check(a, "h", T + 1, T + 2, SRD_O, "s93", waitcnt(g.vm.need(lambda tg: tg[0] == "P"), None))
    nop = lambda: None
    hs = []
    SPS = P["SPS"]
    for i in range(P["NS0"], 24, SPS):
        def fh(i=i):
            for k in range(i, min(i + SPS, 24)):
                g.emit(a, h_store(k))
        hs.append(fh)
    side = hs + [lambda: late(0), lambda: late(1)]
    nh = len(side)
    side += wi + [wo_pf]
    side.insert(nh + PUB, pub)
    HP += nh + PUB
    if len(side) < HP - 3:
        side += [nop] * (HP - 3 - len(side))
    side.insert(HP - 3, hp_issue)
    if len(side) < HP:
        side += [nop] * (HP - len(side))
    side.insert(HP, hp_check)
    assert nh + PUB < 22, "g must have landed by the end of instance 0"
    side += ai
    for inst in range(2):
        if inst == 1:
            stamp(a)
            a("v_add_u32 v%d, 0x800, v%d" % (V_RD, V_RD))
            a("s_sub_i32 s%d, s%d, 1" % (S_T2, S_T2))
            a("s_max_i32 s%d, s%d, 0" % (S_T0, S_T2))
        for st in K2.attention(a, fix, inst, side, None):
            g.emit(a, ([], st, ("O", -1)))
    while side:
        side.pop(0)()
    stamp(a)
    for i in range(0, 128, 2):
        a("v_mov_b64 v[%d:%d], 0" % (i, i + 1))
    g.barrier(a, -BP)
    for t in range(8):
        for jj in range(2):
            g.rdw(a, 0, t, jj)
    a("s_mov_b32 s%d, %d" % (S_CNT, NIT))
    PEEL = R - L
    for j in range(PEEL):
        g.step(a, j, loads=False)
    a("s_add_u32 s3, s%d, 8" % S_FO)
    a("s_waitcnt vmcnt(0)")
    g.vm.drain()
    a("s_barrier")
    flag_store(a, "o", 3, T)
    stamp(a)
    a("s_branch L_g2_entry")
    SW = NH - L
    hooks = {SW - POLL: "poll", SW: "sw", NH: "scale", NSTEP - L: "end"}
    bodies = []
    for it in range(3):
        b = Asm()
        for j in range(max(PEEL, R * it), R * it + R):
            if j % R == PEEL:
                b.label("L_g2_entry")
            for hs, hn in sorted(hooks.items()):
                if hs % R == j % R:
                    b("s_cmp_eq_u32 s%d, %d" % (S_CNT, NIT - hs // R))
                    b("s_cbranch_scc1 L_h_%s" % hn)
                    b.label("L_hr_%s" % hn)
            g.step(b, j)
        bodies.append(b.text())
    assert bodies[1] == bodies[2], "loop body not periodic"
    a.raw(".p2align 6")
    a.label("L_g2_loop")
    a.raw(bodies[2].rstrip("\n"))
    a("s_sub_u32 s%d, s%d, 1" % (S_CNT, S_CNT))
    a("s_cmp_lg_u32 s%d, 0" % S_CNT)
    a("s_cbranch_scc1 L_g2_loop")
    a("s_nop 7")
    stamp(a)
    a("s_lshl_b32 s3, s%d, 3" % S_MT)
    a("s_add_u32 s3, s3, s%d" % S_NT)
    a("s_lshl_b32 s4, s3, 18")
    a("s_add_u32 s4, s4, s%d" % S_W4K)
    a("s_add_u32 s4, s4, 0x%x" % WS_EX)
    a("s_lshl_b32 s5, s%d, 14" % S_KS)
    a("s_add_u32 s5, s5, s4")
    for p in range(1, 4):
        a("s_add_u32 s6, s%d, %d" % (S_KS, p))
        a("s_and_b32 s6, s6, 3")
        a("s_lshl_b32 s6, s6, 16")
        a("s_add_u32 s6, s6, s5")
        for u in range(4):
            r0, r1 = acc(2 * p, u), acc(2 * p + 1, u)
            a("v_cvt_pk_f16_f32 v%d, v%d, v%d" % (r0, r0, r0 + 1))
            a("v_cvt_pk_f16_f32 v%d, v%d, v%d" % (r0 + 1, r0 + 2, r0 + 3))
            a("v_cvt_pk_f16_f32 v%d, v%d, v%d" % (r0 + 2, r1, r1 + 1))
            a("v_cvt_pk_f16_f32 v%d, v%d, v%d" % (r0 + 3, r1 + 2, r1 + 3))
            a("buffer_store_dwordx4 %s, v%d, s[%d:%d], s6 offen offset:%d sc1" % (vr(r0, 4), V_L16, SRD_O, SRD_O + 3, 1024 * u))
    a("v_lshrrev_b32 v%d, 4, v%d" % (T, V_L16))
    a("s_lshl_b32 s%d, s%d, 7" % (S_T2, S_NT))
    a("s_add_u32 s%d, s%d, s%d" % (S_T2, S_T2, S_FM))
    a("s_add_u32 s%d, s%d, 12" % (S_T2, S_T2))
    a("s_add_u32 s7, s%d, 12" % S_FO)
    a("v_lshlrev_b32 v%d, 10, v%d" % (T + 2, T))
    a("v_and_b32 v%d, 0xc00, v%d" % (T + 2, T + 2))
    a("s_waitcnt vmcnt(0)")
    a("s_barrier")
    flag_store(a, "x", 7, T + 1)
    a("buffer_load_dword v%d, v%d, s[%d:%d], s%d offen sc1" % (T + 3, T + 2, SRD_O, SRD_O + 3, S_T2))
    a("s_mov_b32 s%d, s%d" % (SRD_W, S_OUT))
    a("s_and_b32 s%d, s%d, 0xffff" % (SRD_W + 1, S_OUT + 1))
    a("s_mov_b32 s%d, 0x400000" % (SRD_W + 2))
    a("s_lshl_b32 s7, s%d, 19" % S_MT)
    a("s_lshl_b32 s6, s%d, 17" % S_WAVE)
    a("s_add_u32 s7, s7, s6")
    a("s_add_u32 s7, s7, s%d" % S_COL)
    a("s_lshl_b32 s6, s%d, 6" % S_KS)
    a("s_add_u32 s7, s7, s6")
    a("v_and_b32 v%d, 15, v%d" % (V_RD, T))
    a("v_lshlrev_b32 v%d, 11, v%d" % (V_RD, V_RD))
    a("v_bfe_u32 v%d, v%d, 4, 1" % (T + 1, T))
    a("v_lshl_add_u32 v%d, v%d, 5, v%d" % (V_RD, T + 1, V_RD))
    a("v_bfe_u32 v%d, v%d, 5, 1" % (T + 1, T))
    a("v_lshl_add_u32 v%d, v%d, 4, v%d" % (V_RD, T + 1, V_RD))
    a("s_lshl_b32 s6, s%d, 16" % S_KS)
    a("s_add_u32 s4, s4, s6")
    spin_check(a, "x", T + 2, T + 3, SRD_O, "s%d" % S_T2, "s_waitcnt vmcnt(0)")
    stamp(a)
    X = 32
    for p in range(1, 4):
        a("s_add_u32 s6, s%d, %d" % (S_KS, p))
        a("s_and_b32 s6, s6, 3")
        a("s_lshl_b32 s6, s6, 14")
        a("s_add_u32 s6, s6, s4")
        for u in range(4):
            a("buffer_load_dwordx4 %s, v%d, s[%d:%d], s6 offen offset:%d sc1" % (
                vr(X + (u * 3 + p - 1) * 4, 4), V_L16, SRD_O, SRD_O + 3, 1024 * u))
    for u in range(4):
        a("s_waitcnt vmcnt(3)")
        r0, r1 = acc(0, u), acc(1, u)
        for p in range(3):
            x = X + (u * 3 + p) * 4
            for i in range(4):
                d = (r0 if i < 2 else r1) + 2 * (i & 1)
                a("v_fma_mix_f32 v%d, v%d, 1.0, v%d op_sel_hi:[1,0,0]" % (d, x + i, d))
                a("v_fma_mix_f32 v%d, v%d, 1.0, v%d op_sel:[1,0,0] op_sel_hi:[1,0,0]" % (d + 1, x + i, d + 1))
        a("v_cvt_pk_bf16_f32 v%d, v%d, v%d" % (r0, r0, r0 + 1))
        a("v_cvt_pk_bf16_f32 v%d, v%d, v%d" % (r0 + 1, r0 + 2, r0 + 3))
        a("v_cvt_pk_bf16_f32 v%d, v%d, v%d" % (r0 + 2, r1, r1 + 1))
        a("v_cvt_pk_bf16_f32 v%d, v%d, v%d" % (r0 + 3, r1 + 2, r1 + 3))
        a("v_permlane16_swap_b32 v%d, v%d" % (r0, r0 + 2))
        a("v_permlane16_swap_b32 v%d, v%d" % (r0 + 1, r0 + 3))
        a("s_nop 1")
        a("buffer_store_dwordx4 %s, v%d, s[%d:%d], s7 offen" % (vr(r0, 4), V_RD, SRD_W, SRD_W + 3))
        a("s_add_u32 s7, s7, 0x8000")
    if K1.STAMPS:
        a("s_waitcnt vmcnt(0)")
        stamp(a)
        stamp(a, 6, True)
        stamp_flush(a, 7, SRD_O)
    a.label("L_exit")
    a("s_endpgm")
    a.label("L_h_poll")
    a("v_lshlrev_b32 v%d, 3, v%d" % (T + 1, V_L16))
    a("v_and_b32 v%d, 0x380, v%d" % (T + 1, T + 1))
    a("s_add_u32 s%d, s93, 8" % S_T2)
    a("buffer_load_dword v%d, v%d, s[%d:%d], s%d offen sc1" % (T + 2, T + 1, SRD_O, SRD_O + 3, S_T2))
    a("s_branch L_hr_poll")
    a.label("L_h_sw")
    spin_check(a, "o", T + 1, T + 2, SRD_O, "s%d" % S_T2, "s_waitcnt vmcnt(%d)" % (6 * POLL))
    a("s_lshl_b32 s3, s%d, 3" % S_KS)
    a("s_lshl_b32 s%d, s3, 14" % S_ABEG)
    a("s_add_u32 s%d, s%d, s%d" % (S_ABEG, S_ABEG, S_W4K))
    a("s_lshl_b32 s%d, s3, 16" % S_WBEG)
    a("s_add_u32 s%d, s%d, 0x%x" % (S_WEND, S_WBEG, NO << 16))
    a("s_lshl_b32 s4, s%d, 1" % S_MT)
    a("s_add_u32 s4, s4, s%d" % S_NT)
    a("s_and_b32 s4, s4, 7")
    a("s_lshl_b32 s3, s4, 14")
    a("s_add_u32 s%d, s%d, s3" % (S_OFFA, S_ABEG))
    a("s_lshl_b32 s3, s4, 16")
    a("s_add_u32 s%d, s%d, s3" % (S_OFFW, S_WBEG))
    a("s_add_u32 s%d, s%d, s%d" % (SRD_W, S_WO, S_COL))
    a("s_addc_u32 s%d, s%d, 0" % (SRD_W + 1, S_WO + 1))
    a("s_and_b32 s%d, s%d, 0xffff" % (SRD_W + 1, SRD_W + 1))
    a("s_sub_u32 s%d, 0x200000, s%d" % (SRD_W + 2, S_COL))
    a("s_branch L_hr_sw")
    a.label("L_h_end")
    a("s_mov_b32 s%d, 0" % (SRD_W + 2))
    a("s_mov_b32 s%d, 0" % (SRD_A + 2))
    a("s_branch L_hr_end")
    a.label("L_h_scale")
    a("s_nop 7")
    for t in range(8):
        for u in range(4):
            r = acc(t, u)
            for i in range(4):
                a("v_mul_f32 v%d, v%d, v%d" % (r + i, r + i, V_OMG + u))
    a("s_nop 1")
    a("s_branch L_hr_scale")


def gen_g(name="mk_kernel", RA=3, R=12, L=10, BP=2, POLL=4, PUB=6, HP=6, **kw):
    P.update(kw)
    K1.PFD = 0
    K1.PF2 = False
    a = Asm()
    tail = Asm()
    a.raw(kernel_header(name).rstrip("\n"))
    a("s_cmp_ge_u32 s2, 256")
    a("s_cbranch_scc1 L_exit0")
    stamp(a, 0, True)
    stamp(a)
    load_kernargs(a)
    C = K1.SRD_C
    a("s_getpc_b64 s[%d:%d]" % (C, C + 1))
    a("s_and_b32 s%d, s%d, 0xffffff00" % (C, C))
    a("s_and_b32 s%d, s%d, 0xffff" % (C + 1, C + 1))
    a("s_mov_b32 s%d, L_end-%s" % (C + 2, name))
    a("s_mov_b32 s%d, 0x20000" % (C + 3))
    a("v_lshlrev_b32 v253, 7, v0")
    a("buffer_load_dword v254, v253, s[%d:%d], 0 offen" % (C, C + 3))
    a("v_add_u32 v253, 0x8000, v253")
    a("buffer_load_dword v254, v253, s[%d:%d], 0 offen" % (C, C + 3))
    a("v_and_b32 v%d, 63, v0" % V_LANE)
    a("v_lshrrev_b32 v1, 6, v0")
    a("v_lshlrev_b32 v%d, 4, v%d" % (V_L16, V_LANE))
    a("v_readfirstlane_b32 s%d, v1" % S_WAVE)
    a("s_and_b32 s3, s2, 1")
    a("s_lshl_b32 s3, s3, 2")
    a("s_bfe_u32 s4, s2, 0x20003")
    a("s_add_u32 s%d, s3, s4" % S_MT)
    a("s_bfe_u32 s3, s2, 0x20001")
    a("s_lshl_b32 s3, s3, 2")
    a("s_bfe_u32 s4, s2, 0x20005")
    a("s_add_u32 s%d, s3, s4" % K1.S_NT)
    a("s_lshr_b32 s%d, s%d, 1" % (K1.S_WR, S_WAVE))
    a("s_and_b32 s%d, s%d, 1" % (K1.S_WC, S_WAVE))
    pro_common(a)
    a("s_cmp_ge_u32 s2, 128")
    a("s_cbranch_scc1 L_ffn")
    n0 = K1.NST[0]
    cq = K1.G1Cfg("qkv", RA, True)
    g1_main(a, tail, cq, "g1q")
    e = Asm()
    e("s_nop 7")
    epi_qkv(e, cq)
    e.lines = fix_hazards("\n".join(e.lines).split("\n"), True)
    a.extend(e)
    a.label("L_exit0")
    a("s_endpgm")
    a.label("L_ffn")
    K1.NST[0] = n0
    cf = K1.G1Cfg("ffn", RA, True)
    g1_main(a, tail, cf, "g1f")
    b = Asm()
    fix = Asm()
    b("s_nop 7")
    epi_ffn(b, cf)
    second_half(b, fix, R, L, BP, POLL, PUB, HP)
    b.extend(fix)
    b.lines = fix_hazards("\n".join(b.lines).split("\n"), True)
    a.extend(b)
    a.extend(tail)
    a.label("L_end")
    return a.text(), kernel_desc(name, 512, 256, 102), 163840


def full(path, stamps=False, **kw):
    import gen
    K1.STAMPS = bool(stamps)
    K1.ITER_MODE = stamps == "iter"
    t, d, l = gen_g(**kw)
    K1.STAMPS = False
    gen.build([("mk_kernel", t, d, 256, 256, l)], path)


if __name__ == "__main__":
    full("g.s")
    full("g_st.s", True)
    full("g_it.s", "iter")
```
